```python
import torch

def _softmax(x, axis=-1):
    return torch.softmax(x, dim=axis)
def _gelu(x):
    return torch.nn.functional.gelu(x, approximate="tanh")
def _silu(x):
    return torch.nn.functional.silu(x)
def _sigmoid(x):
    return torch.sigmoid(x)
def _layernorm(x, axis=-1, eps=1e-5):
    m = x.mean(dim=axis, keepdim=True)
    v = x.var(dim=axis, keepdim=True, unbiased=False)
    return (x - m) / torch.sqrt(v + eps)
def _scatter_add(tgt, idx, src, axis=0):
    return tgt.clone().index_add_(axis, idx, src)
def _segment_sum(src, seg, n):
    out = torch.zeros((n,) + src.shape[1:], dtype=src.dtype)
    return out.index_add_(0, seg, src)
def _pad(x, pw):
    flat = tuple(v for pair in reversed(pw) for v in pair)
    return torch.nn.functional.pad(x, flat)

kernel_name = 'interleave_layers__softmax_full_mha__mixer_s_mlp__prompt'

def setup_inputs():

    _w = (lambda a: (lambda t: t.to(torch.bfloat16) if t.is_floating_point() else t)(torch.as_tensor(a)))
    def _A_setup():
        B, S, D = 1, 2048, 512
        return {
            "x": _w((lambda *s: torch.randn(*s, dtype=torch.bfloat16) * 0.05)(B, S, D)),
            "wqkv": _w((lambda *s: torch.randn(*s, dtype=torch.bfloat16) * 0.05)(D, 3 * D)),
            "wo": _w((lambda *s: torch.randn(*s, dtype=torch.bfloat16) * 0.05)(D, D)),
        }
    _A_in = _A_setup()

    def _B_setup():
        B, S, D, F = 1, 2048, 512, 1792
        return {
            "x":  _w((lambda *s: torch.randn(*s, dtype=torch.bfloat16) * 0.05)(B, S, D)),
            "w1": _w((lambda *s: torch.randn(*s, dtype=torch.bfloat16) * 0.8)(D, D) * (D ** -0.5)),
            "w2": _w((lambda *s: torch.randn(*s, dtype=torch.bfloat16) * 0.8)(D, D) * (D ** -0.5)),
            "w3": _w((lambda *s: torch.randn(*s, dtype=torch.bfloat16) * 0.8)(D, F) * (D ** -0.5)),
            "w4": _w((lambda *s: torch.randn(*s, dtype=torch.bfloat16) * 0.8)(F, D) * (F ** -0.5)),
        }
    _B_in = _B_setup()

    return {
        "A_x": _A_in["x"],
        "A_wqkv": _A_in["wqkv"],
        "A_wo": _A_in["wo"],
        "B_x": _B_in["x"],
        "B_w1": _B_in["w1"],
        "B_w2": _B_in["w2"],
        "B_w3": _B_in["w3"],
        "B_w4": _B_in["w4"],
    }

def reference(A_x, A_wqkv, A_wo, B_x, B_w1, B_w2, B_w3, B_w4):
    def _A_ref(x, wqkv, wo):
        B, S, D = x.shape
        H = 32; Dh = D // H
        qkv = (lambda x, *d: x.permute(*d))((x @ wqkv).reshape(B, S, 3, H, Dh), 2, 0, 3, 1, 4)
        q, k, v = qkv[0], qkv[1], qkv[2]
        scale = Dh ** -0.5
        scores = torch.einsum("bhqd,bhkd->bhqk", q, k) * scale
        p = _softmax(scores, axis=-1)
        o = torch.einsum("bhqk,bhkd->bhqd", p, v)
        return (lambda x, *d: x.permute(*d))(o, 0, 2, 1, 3).reshape(B, S, D) @ wo

    def _B_ref(x, w1, w2, w3, w4):
        B, S, D = x.shape
        h = _gelu(_layernorm(x, axis=-1) @ w1)
        c = D // 4
        g0 = _pad(h[:, :, 0*c:1*c], ((0, 0), (1, 0), (0, 0)))[:, :S, :]
        g1 = _pad(h[:, :, 1*c:2*c], ((0, 0), (0, 1), (0, 0)))[:, 1:, :]
        g2 = _pad(h[:, :, 2*c:3*c], ((0, 0), (2, 0), (0, 0)))[:, :S, :]
        g3 = _pad(h[:, :, 3*c:   ], ((0, 0), (0, 2), (0, 0)))[:, 2:, :]
        hs = torch.concatenate([g0, g1, g2, g3], axis=-1) @ w2
        x1 = x + hs
        h2 = _gelu(_layernorm(x1, axis=-1) @ w3) @ w4
        return x1 + h2

    x = A_x
    x = x + _A_ref(_layernorm(x, axis=-1), A_wqkv, A_wo)
    x = x + _B_ref(_layernorm(x, axis=-1), B_w1, B_w2, B_w3, B_w4)
    x = x + _A_ref(_layernorm(x, axis=-1), A_wqkv, A_wo)
    x = x + _B_ref(_layernorm(x, axis=-1), B_w1, B_w2, B_w3, B_w4)
    return x
```

```python
from common import *

BOUND_MAX = 60.0

def attn_kernel(name):
    g = Gen()
    g(kernel_header(name))
    S_WS = 12
    S_HEAD, S_QB, S_WAVE, S_T = 20, 21, 22, 23
    S_TMP = 30
    S_MASK = 40
    vQ = 4
    vK = 8
    vV = 16
    vP = 24
    vSa = 32
    vSb = 48
    vO = 64
    vM = 80
    vKa, vVa = 96, 97
    t0 = 98
    g(f"""
    s_cmp_ge_u32 s2, 256
    s_cbranch_scc1 L_{name}_end
    s_load_dwordx2 s[6:7], s[0:1], {KA_WS}
    v_lshrrev_b32 v1, 6, v0
    v_and_b32 v0, 63, v0
    s_and_b32 s{S_TMP}, s2, 7
    s_lshr_b32 s{S_TMP+1}, s2, 3
    v_readfirstlane_b32 s{S_WAVE}, v1
    s_and_b32 s{S_QB}, s{S_TMP+1}, 7
    s_lshr_b32 s{S_TMP+1}, s{S_TMP+1}, 3
    s_lshl_b32 s{S_HEAD}, s{S_TMP}, 2
    s_add_u32 s{S_HEAD}, s{S_HEAD}, s{S_TMP+1}
    s_lshl_b32 s{S_T}, s{S_QB}, 3
    s_add_u32 s{S_T}, s{S_T}, s{S_WAVE}
    s_waitcnt lgkmcnt(0)
    """)
    srd(g, S_WS, 6, 7, WS_USED)
    g(f"""
    v_lshlrev_b32 v2, 4, v0                   ; lane*16
    s_lshl_b32 s{S_TMP}, s{S_HEAD}, 16
    s_lshl_b32 s{S_TMP+1}, s{S_WAVE}, 10
    s_add_u32 s{S_TMP}, s{S_TMP}, s{S_TMP+1}  ; head*64K + w*1K
    v_add_u32 v3, s{S_TMP}, v2
    s_lshl_b32 s{S_TMP+2}, s{S_WAVE}, 10
    """)
    g(f"""
    s_lshl_b32 s{S_TMP+3}, s{S_HEAD}, 16
    s_lshl_b32 s{S_TMP+4}, s{S_T}, 10
    s_add_u32 s{S_TMP+3}, s{S_TMP+3}, s{S_TMP+4}
    s_add_u32 s{S_TMP+3}, s{S_TMP+3}, {WS_Q}
    v_add_u32 v{t0}, s{S_TMP+3}, v2
    """)
    g.vmem(f"buffer_load_dwordx4 v[{vQ}:{vQ+3}], v{t0}, s[{S_WS}:{S_WS+3}], 0 offen", "q")
    g(f"""
    s_lshl_b32 s{S_TMP+3}, s{S_HEAD}, 8
    s_add_u32 s{S_TMP+3}, s{S_TMP+3}, {WS_KN}
    v_lshlrev_b32 v{t0+1}, 2, v0
    v_add_u32 v{t0+1}, s{S_TMP+3}, v{t0+1}
    """)
    g.vmem(f"buffer_load_dword v{t0+2}, v{t0+1}, s[{S_WS}:{S_WS+3}], 0 offen", "q")
    for c in range(8):
        g(f"s_mov_b32 s{S_TMP+4}, {WS_K + c*8192}")
        g(f"s_add_u32 m0, s{S_TMP+2}, {c*8192}")
        g(f"s_mov_b32 s{S_TMP+5}, {WS_V + c*8192}")
        g.vmem(f"buffer_load_dwordx4 v3, s[{S_WS}:{S_WS+3}], s{S_TMP+4} offen lds", f"d{c}")
        g(f"s_add_u32 m0, s{S_TMP+2}, {65536 + c*8192}")
        g("s_nop 0")
        g.vmem(f"buffer_load_dwordx4 v3, s[{S_WS}:{S_WS+3}], s{S_TMP+5} offen lds", f"d{c}")
    g(f"""
    v_mov_b32 v{vKa}, v2
    v_lshrrev_b32 v{t0+3}, 5, v0
    v_lshlrev_b32 v{t0+3}, 8, v{t0+3}          ; h*256
    v_and_b32 v{t0+4}, 15, v0
    v_lshl_add_u32 v{t0+3}, v{t0+4}, 4, v{t0+3}
    v_add_u32 v{vVa}, 65536, v{t0+3}
    s_mov_b32 s{S_MASK}, 0x0000ffff
    s_mov_b32 s{S_MASK+1}, 0x0000ffff
    """)
    for i in range(8):
        g(f"v_mov_b32 v{vV+i}, 0x3f803f80")
    for i in range(16):
        g(f"v_mov_b32 v{vO+i}, 0")
    g.wait_vm("q")
    kn = t0 + 2
    for ror in (8, 4, 2, 1):
        g("s_nop 1")
        g(f"v_max_f32_dpp v{kn}, v{kn}, v{kn} row_ror:{ror} row_mask:0xf bank_mask:0xf")
    g(f"v_mov_b32 v{kn+1}, v{kn}")
    g("s_nop 1")
    g(f"v_permlane16_swap_b32 v{kn}, v{kn+1}")
    g("s_nop 1")
    g(f"v_max_f32 v{kn}, v{kn}, v{kn+1}")
    g(f"v_mov_b32 v{kn+1}, v{kn}")
    g("s_nop 1")
    g(f"v_permlane32_swap_b32 v{kn}, v{kn+1}")
    g("s_nop 1")
    g(f"v_max_f32 v{kn}, v{kn}, v{kn+1}")
    qn = t0 + 4
    g(f"v_lshlrev_b32 v{t0}, 16, v{vQ}")
    g(f"v_and_b32 v{t0+1}, 0xffff0000, v{vQ}")
    g(f"v_mul_f32 v{qn}, v{t0}, v{t0}")
    g(f"v_fmac_f32 v{qn}, v{t0+1}, v{t0+1}")
    for i in range(1, 4):
        g(f"v_lshlrev_b32 v{t0}, 16, v{vQ+i}")
        g(f"v_and_b32 v{t0+1}, 0xffff0000, v{vQ+i}")
        g(f"v_fmac_f32 v{qn}, v{t0}, v{t0}")
        g(f"v_fmac_f32 v{qn}, v{t0+1}, v{t0+1}")
    g(f"v_mov_b32 v{qn+1}, v{qn}")
    g("s_nop 1")
    g(f"v_permlane32_swap_b32 v{qn}, v{qn+1}")
    g("s_nop 1")
    g(f"v_add_f32 v{qn}, v{qn}, v{qn+1}")
    g(f"v_mul_f32 v{qn}, v{qn}, v{kn}")
    g(f"v_sqrt_f32 v{qn}, v{qn}")
    g("s_nop 0")
    g(f"v_mul_f32 v{qn}, {fl(1.02)}, v{qn}")
    g(f"v_cmp_nge_f32 vcc, {fl(BOUND_MAX)}, v{qn}")
    g(f"v_sub_f32 v{t0}, 0, v{qn}")
    for i in range(16):
        g(f"v_mov_b32 v{vM+i}, v{t0}")
    d_tags_rest = [f"d{c}" for c in range(1, 8)]
    g.wait_vm("d0")
    g("s_barrier")
    g(f"s_cbranch_vccnz L_{name}_slow")

    def kread(dst, off):
        g(f"ds_read_b128 v[{dst}:{dst+3}], v{vKa} offset:{off}")
    def vread(off):
        g(f"s_mov_b64 exec, s[{S_MASK}:{S_MASK+1}]")
        g(f"ds_read_b128 v[{vV}:{vV+3}], v{vVa} offset:{off}")
        g(f"ds_read_b128 v[{vV+4}:{vV+7}], v{vVa} offset:{off+512}")
        g("s_mov_b64 exec, -1")
    def qk(dstS, kreg):
        g(f"v_mfma_f32_32x32x16_bf16 v[{dstS}:{dstS+15}], v[{kreg}:{kreg+3}], v[{vQ}:{vQ+3}], v[{vM}:{vM+15}]")
    def tile(cur, nxt, kcur_next, kreg_next2, off_k2, off_v1, do_qk=True, do_k=True, do_v=True):
        if do_qk:
            g("s_waitcnt lgkmcnt(2)")
            qk(nxt, kcur_next)
            if do_k:
                kread(kreg_next2, off_k2)
        for i in range(8):
            g(f"v_exp_f32 v{cur+i}, v{cur+i}")
        for i in range(4):
            g(f"v_cvt_pk_bf16_f32 v{vP+i}, v{cur+2*i}, v{cur+2*i+1}")
        g(f"v_exp_f32 v{cur+8}, v{cur+8}")
        g(f"s_waitcnt lgkmcnt({1 if (do_qk and do_k) else 0})")
        g(f"v_mfma_f32_32x32x16_bf16 v[{vO}:{vO+15}], v[{vV}:{vV+3}], v[{vP}:{vP+3}], v[{vO}:{vO+15}]")
        for i in range(9, 16):
            g(f"v_exp_f32 v{cur+i}, v{cur+i}")
        for i in range(4, 8):
            g(f"v_cvt_pk_bf16_f32 v{vP+i}, v{cur+2*i}, v{cur+2*i+1}")
        g("s_nop 1")
        g(f"v_mfma_f32_32x32x16_bf16 v[{vO}:{vO+15}], v[{vV+4}:{vV+7}], v[{vP+4}:{vP+7}], v[{vO}:{vO+15}]")
        if do_v:
            vread(off_v1)
    kread(vK, 0)
    g("s_waitcnt lgkmcnt(0)")
    qk(vSa, vK)
    kread(vK+4, 1024)
    vread(0)
    g("s_nop 7")
    def two_tiles(last=False):
        tile(vSa, vSb, vK+4, vK, 2048, 1024)
        if not last:
            tile(vSb, vSa, vK, vK+4, 3072, 2048)
            g(f"v_add_u32 v{vKa}, 2048, v{vKa}")
            g(f"v_add_u32 v{vVa}, 2048, v{vVa}")
        else:
            tile(vSb, vSa, vK, vK+4, 0, 0, do_qk=False, do_v=False)
    g(f"s_mov_b32 s{S_TMP}, 2")
    g(f"L_{name}_l0:")
    two_tiles()
    g(f"s_sub_u32 s{S_TMP}, s{S_TMP}, 1")
    g(f"s_cmp_lg_u32 s{S_TMP}, 0")
    g(f"s_cbranch_scc1 L_{name}_l0")
    g("s_waitcnt vmcnt(0)")
    g("s_barrier")
    g(f"s_mov_b32 s{S_TMP}, 29")
    g(f"L_{name}_l1:")
    two_tiles()
    g(f"s_sub_u32 s{S_TMP}, s{S_TMP}, 1")
    g(f"s_cmp_lg_u32 s{S_TMP}, 0")
    g(f"s_cbranch_scc1 L_{name}_l1")
    tile(vSa, vSb, vK+4, vK, 0, 1024, do_k=False)
    tile(vSb, vSa, vK, vK+4, 0, 0, do_qk=False, do_v=False)
    g(f"s_branch L_{name}_fin")

    g(f"L_{name}_slow:")
    g("s_waitcnt vmcnt(0)")
    g("s_barrier")
    vm = t0
    g(f"v_mov_b32 v{vm}, 0xff800000")
    g(f"s_mov_b32 s{S_TMP}, 64")
    g(f"L_{name}_sl:")
    kread(vK, 0)
    vread(0)
    g("s_waitcnt lgkmcnt(0)")
    g(f"v_mfma_f32_32x32x16_bf16 v[{vSa}:{vSa+15}], v[{vK}:{vK+3}], v[{vQ}:{vQ+3}], 0")
    g("s_nop 15")
    g(f"v_max3_f32 v{t0+1}, v{vSa}, v{vSa+1}, v{vSa+2}")
    for i in range(3, 15, 2):
        g(f"v_max3_f32 v{t0+1}, v{t0+1}, v{vSa+i}, v{vSa+i+1}")
    g(f"v_max_f32 v{t0+1}, v{t0+1}, v{vSa+15}")
    g(f"v_mov_b32 v{t0+2}, v{t0+1}")
    g("s_nop 1")
    g(f"v_permlane32_swap_b32 v{t0+1}, v{t0+2}")
    g("s_nop 1")
    g(f"v_max3_f32 v{t0+1}, v{t0+1}, v{t0+2}, v{vm}")
    g(f"v_sub_f32 v{t0+2}, v{vm}, v{t0+1}")
    g(f"v_exp_f32 v{t0+2}, v{t0+2}")
    g(f"v_mov_b32 v{vm}, v{t0+1}")
    for i in range(16):
        g(f"v_mul_f32 v{vO+i}, v{vO+i}, v{t0+2}")
    for i in range(16):
        g(f"v_sub_f32 v{vSa+i}, v{vSa+i}, v{vm}")
    for i in range(16):
        g(f"v_exp_f32 v{vSa+i}, v{vSa+i}")
    g("s_nop 0")
    for i in range(8):
        g(f"v_cvt_pk_bf16_f32 v{vP+i}, v{vSa+2*i}, v{vSa+2*i+1}")
    g("s_nop 1")
    g(f"v_mfma_f32_32x32x16_bf16 v[{vO}:{vO+15}], v[{vV}:{vV+3}], v[{vP}:{vP+3}], v[{vO}:{vO+15}]")
    g(f"v_mfma_f32_32x32x16_bf16 v[{vO}:{vO+15}], v[{vV+4}:{vV+7}], v[{vP+4}:{vP+7}], v[{vO}:{vO+15}]")
    g(f"v_add_u32 v{vKa}, 1024, v{vKa}")
    g(f"v_add_u32 v{vVa}, 1024, v{vVa}")
    g("s_nop 15")
    g(f"s_sub_u32 s{S_TMP}, s{S_TMP}, 1")
    g(f"s_cmp_lg_u32 s{S_TMP}, 0")
    g(f"s_cbranch_scc1 L_{name}_sl")

    g(f"L_{name}_fin:")
    g(f"""
    s_lshl_b32 s{S_TMP}, s{S_T}, 15
    s_lshl_b32 s{S_TMP+1}, s{S_HEAD}, 10
    s_add_u32 s{S_TMP}, s{S_TMP}, s{S_TMP+1}
    s_add_u32 s{S_TMP}, s{S_TMP}, {WS_O}
    v_add_u32 v{t0}, s{S_TMP}, v2
    s_nop 15
    v_rcp_f32 v{t0+1}, v{vO+8}
    s_nop 0
    """)
    for i in range(8):
        g(f"v_mul_f32 v{vO+i}, v{vO+i}, v{t0+1}")
    for i in range(4):
        g(f"v_cvt_pk_bf16_f32 v{vP+i}, v{vO+2*i}, v{vO+2*i+1}")
    g(f"buffer_store_dwordx4 v[{vP}:{vP+3}], v{t0}, s[{S_WS}:{S_WS+3}], 0 offen")
    g(f"L_{name}_end:")
    g("s_endpgm")
    return g.text() + kernel_desc(name, 112, 64), dict(name=name, grid=256, block=512, lds=131072)
```

```python
import struct, math

S = 2048; D = 512; H = 32; DH = 16; F = 1792
NT = S // 32

def f2u(x):
    return struct.unpack("<I", struct.pack("<f", x))[0]
def fl(x):
    return hex(f2u(x))

KA_X, KA_WQKV, KA_WO, KA_BX, KA_W1, KA_W2, KA_W3, KA_W4, KA_OUT, KA_DBG, KA_WS = [8*i for i in range(11)]

MB = 1 << 20
WS_X   = 0 * MB
WS_X1  = 2 * MB
WS_H   = 4 * MB
WS_Y   = 6 * MB
WS_Q   = 8 * MB
WS_K   = 10 * MB
WS_V   = 12 * MB
WS_O   = 14 * MB
WS_G   = 16 * MB
WS_SX  = 24 * MB
WS_SX1 = 24 * MB + 256 * 1024
WS_SY  = 24 * MB + 512 * 1024
WS_MR  = 24 * MB + 768 * 1024
WS_KN  = 24 * MB + 800 * 1024
WS_CSQ = 24 * MB + 832 * 1024
WS_CS1 = WS_CSQ + 8192
WS_CS3 = WS_CS1 + 4096
WS_USED = 25 * MB

class Gen:
    def __init__(self):
        self.l = []
        self.vm = []
        self.lg = []
    def __call__(self, s=""):
        for x in s.split("\n"):
            x = x.strip()
            if x:
                self.l.append(("" if x.endswith(":") or x.startswith(".") else "    ") + x)
    def text(self):
        return "\n".join(self.l) + "\n"
    def vmem(self, instr, tag=None):
        self(instr); self.vm.append(tag)
    def lds(self, instr, tag=None):
        self(instr); self.lg.append(tag)
    def _need(self, lst, tags):
        if not isinstance(tags, (list, tuple, set)): tags = [tags]
        idx = [i for i, t in enumerate(lst) if t in tags]
        if not idx: return None
        return len(lst) - 1 - max(idx)
    def wait_vm(self, tags, extra=""):
        n = self._need(self.vm, tags)
        if n is None:
            if extra: self(extra)
            return
        if n <= 63:
            self(f"s_waitcnt vmcnt({n})")
        self.vm = self.vm[len(self.vm) - n:] if n > 0 else []
    def wait_lg(self, tags):
        n = self._need(self.lg, tags)
        if n is None: return
        assert n <= 15, f"lgkmcnt {n} too large"
        self(f"s_waitcnt lgkmcnt({n})")
        self.lg = self.lg[len(self.lg) - n:] if n > 0 else []
    def wait_all_vm(self):
        self("s_waitcnt vmcnt(0)"); self.vm = []
    def wait_all_lg(self):
        self("s_waitcnt lgkmcnt(0)"); self.lg = []
    def nop(self, n):
        while n > 0:
            k = min(n, 16)
            self(f"s_nop {k-1}")
            n -= k

def vr(a, n=1):
    return f"v{a}" if n == 1 else f"v[{a}:{a+n-1}]"
def sr(a, n=1):
    return f"s{a}" if n == 1 else f"s[{a}:{a+n-1}]"

def srd(g, dst, lo, hi, nbytes):
    g(f"s_mov_b32 s{dst}, s{lo}")
    g(f"s_mov_b32 s{dst+1}, s{hi}")
    g(f"s_mov_b32 s{dst+2}, {hex(nbytes)}")
    g(f"s_mov_b32 s{dst+3}, 0x00020000")

def kernel_header(name):
    return f""".text
.globl {name}
.p2align 8
.type {name},@function
{name}:
"""

def kernel_desc(name, vgprs, sgprs=96, accum=None):
    acc = accum if accum is not None else ((vgprs + 3) // 4) * 4
    return f""".section .rodata,"a"
.p2align 6
.amdhsa_kernel {name}
  .amdhsa_next_free_vgpr {vgprs}
  .amdhsa_next_free_sgpr {sgprs}
  .amdhsa_accum_offset {acc}
  .amdhsa_group_segment_fixed_size 0
  .amdhsa_kernarg_size 88
  .amdhsa_user_sgpr_count 2
  .amdhsa_user_sgpr_kernarg_segment_ptr 1
  .amdhsa_system_sgpr_workgroup_id_x 1
  .amdhsa_float_denorm_mode_32 3
.end_amdhsa_kernel
.text
"""
```

```python
from common import *

LOG2E = 1.4426950408889634
GELU_C0 = -2.0 * LOG2E * math.sqrt(2.0 / math.pi)
GELU_C1 = GELU_C0 * 0.044715
EPS = 1e-5

S_W   = 8
S_WS  = 12
S_OUT = 16
S_TB, S_J, S_WAVE, S_TT, S_NG = 20, 21, 22, 23, 24
S_KB, S_KA, S_DMA = 25, 26, 27
S_T   = 28
S_TMP = 30
S_EXEC = 40

class Cfg:
    pass

def unpack_lo(g, dst, src): g(f"v_lshlrev_b32 v{dst}, 16, v{src}")
def unpack_hi(g, dst, src): g(f"v_and_b32 v{dst}, 0xffff0000, v{src}")

def gemm_prologue(g, name, c):
    g(kernel_header(name))
    g(f"""
    s_cmp_ge_u32 s2, 256
    s_cbranch_scc1 L_{name}_end
    s_load_dwordx2 s[4:5], s[0:1], {c.w_ka}
    s_load_dwordx2 s[6:7], s[0:1], {KA_WS}
    """)
    if c.need_out:
        g(f"s_load_dwordx2 s[{S_TMP+2}:{S_TMP+3}], s[0:1], {KA_OUT}")
    g(f"""
    v_lshrrev_b32 v1, 6, v0
    v_and_b32 v0, 63, v0                 ; lane
    s_and_b32 s{S_TMP}, s2, 7            ; xcd
    s_lshr_b32 s{S_TMP+1}, s2, 3         ; idx
    v_readfirstlane_b32 s{S_WAVE}, v1
    s_and_b32 s{S_J}, s{S_TMP+1}, 7
    s_lshr_b32 s{S_TMP+1}, s{S_TMP+1}, 3
    s_lshl_b32 s{S_TB}, s{S_TMP}, 2
    s_add_u32 s{S_TB}, s{S_TB}, s{S_TMP+1}
    s_and_b32 s{S_TT}, s{S_WAVE}, 1
    s_lshr_b32 s{S_NG}, s{S_WAVE}, 1
    s_lshl_b32 s{S_T}, s{S_TB}, 1
    s_add_u32 s{S_T}, s{S_T}, s{S_TT}
    s_waitcnt lgkmcnt(0)
    """)
    srd(g, S_W, 4, 5, c.w_bytes)
    srd(g, S_WS, 6, 7, WS_USED)
    if c.need_out:
        srd(g, S_OUT, S_TMP+2, S_TMP+3, S * D * 2)

def gemm_main(g, name, c, V):
    KS, NTn, NB = c.KS, c.NTn, c.NB
    SB = (2 + NTn) * 1024
    CB = 4 * SB
    NC = KS // 4
    tstride = KS * 1024
    vB, vA = V['vB'], V['vA']
    t0, t1, t2 = V['t0'], V['t0']+1, V['t0']+2
    if not c.shift:
        g(f"""
        s_lshl_b32 s{S_TMP}, s{S_TB}, 1
        s_mul_i32 s{S_TMP}, s{S_TMP}, {tstride}
        s_lshl_b32 s{S_TMP+1}, s{S_WAVE}, 10
        s_add_u32 s{S_TMP}, s{S_TMP}, s{S_TMP+1}
        s_add_u32 s{S_TMP}, s{S_TMP}, {c.b_off}
        v_lshlrev_b32 v{vB}, 4, v0
        v_add_u32 v{vB}, s{S_TMP}, v{vB}
        v_add_u32 v{vB+1}, {tstride}, v{vB}
        """)
    else:
        g(f"""
        s_lshl_b32 s{S_TMP}, s{S_TB}, 6
        v_and_b32 v{t0}, 31, v0
        v_add_u32 v{t0}, s{S_TMP}, v{t0}
        v_lshrrev_b32 v{t1}, 5, v0
        v_lshlrev_b32 v{t1}, 9, v{t1}             ; h*512
        s_lshl_b32 s{S_TMP+1}, s{S_WAVE}, 10
        s_add_u32 s{S_TMP+1}, s{S_TMP+1}, {c.b_off}
        v_add_u32 v{t1}, s{S_TMP+1}, v{t1}        ; base + w*1024 + h*512
        s_mov_b32 s{S_TMP+2}, 0x80000000
        """)
        for gi, dl in enumerate((-1, 1, -2, 2)):
            for tile in range(2):
                r = vB + 2*gi + tile
                g(f"""
                v_add_u32 v{r}, {32*tile + dl}, v{t0}
                v_cmp_gt_u32 vcc, {S}, v{r}
                v_lshrrev_b32 v{t2}, 5, v{r}
                v_and_b32 v{r}, 31, v{r}
                v_lshlrev_b32 v{r}, 4, v{r}
                v_lshl_add_u32 v{r}, v{t2}, {int(math.log2(tstride))}, v{r}
                v_add_u32 v{r}, v{r}, v{t1}
                v_mov_b32 v{t2}, s{S_TMP+2}
                v_cndmask_b32 v{r}, v{t2}, v{r}, vcc
                """)
    g(f"""
    v_lshrrev_b32 v{t0}, 2, v0
    s_lshl_b32 s{S_TMP}, s{S_WAVE}, 4
    v_add_u32 v{t0}, s{S_TMP}, v{t0}
    s_mov_b32 s{S_TMP+1}, {c.w_row}
    v_mul_lo_u32 v{vA}, v{t0}, s{S_TMP+1}
    v_and_b32 v{t0}, 3, v0
    v_lshl_add_u32 v{vA}, v{t0}, 4, v{vA}
    s_mul_i32 s{S_TMP}, s{S_J}, {c.col_j}
    v_add_u32 v{vA}, s{S_TMP}, v{vA}
    s_mul_i32 s{S_DMA}, s{S_WAVE}, {SB}
    """)
    def dma(chunk):
        slot = chunk % NB
        g(f"s_mov_b32 s{S_KB}, {chunk * 4096}")
        g(f"s_mov_b32 s{S_KA}, {chunk * 64 * c.w_row}")
        for tile in range(2):
            g(f"s_add_u32 m0, s{S_DMA}, {slot*CB + tile*1024}")
            g("s_nop 0")
            r = vB + tile if not c.shift else vB + 2*(chunk >> 1) + tile
            g.vmem(f"buffer_load_dwordx4 v{r}, s[{S_WS}:{S_WS+3}], s{S_KB} offen lds", f"d{chunk}")
        for nt in range(NTn):
            off = c.offs[nt]
            g(f"s_add_u32 m0, s{S_DMA}, {slot*CB + (2+nt)*1024 - off}")
            g("s_nop 0")
            g.vmem(f"buffer_load_dwordx4 v{vA}, s[{S_W}:{S_W+3}], s{S_KA} offen offset:{off} lds", f"d{chunk}")
    nup = min(NB, NC)
    for ch in range(nup):
        dma(ch)
    nbase = (NB * CB + 65535) // 65536
    vRA, vRB = V['vRA'], V['vRB']
    g(f"""
    v_lshrrev_b32 v{t0}, 5, v0
    v_lshlrev_b32 v{t0}, 8, v{t0}             ; h*256
    v_and_b32 v{t1}, 15, v0
    v_lshrrev_b32 v{t2}, 2, v{t1}
    v_lshl_add_u32 v{t0}, v{t2}, 6, v{t0}     ; +(i>>2)*64
    v_and_b32 v{t1}, 3, v{t1}
    v_lshl_add_u32 v{t0}, v{t1}, 3, v{t0}     ; +(i&3)*8
    v_bfe_u32 v{t1}, v0, 4, 1
    v_lshl_add_u32 v{t0}, v{t1}, 5, v{t0}     ; +grp*32
    s_mul_i32 s{S_TMP}, s{S_NG}, {c.ng_stride * 1024}
    s_add_u32 s{S_TMP}, s{S_TMP}, 2048
    v_add_u32 v{vRA}, s{S_TMP}, v{t0}
    s_lshl_b32 s{S_TMP}, s{S_TT}, 10
    v_lshlrev_b32 v{vRB}, 4, v0
    v_add_u32 v{vRB}, s{S_TMP}, v{vRB}
    """)
    for k in range(1, nbase):
        g(f"v_add_u32 v{vRA+k}, {65536*k}, v{vRA}")
        g(f"v_add_u32 v{vRB+k}, {65536*k}, v{vRB}")
    c.epi_loads(g, c, V)
    NW = c.NW
    LA = c.LA
    nset = LA + 1
    fr = V['frag']
    FS = 4*NW + 4
    acc = V['acc']
    def reads(q):
        st = fr + (q % nset) * FS
        ch, i = divmod(q, 4)
        base = (ch % NB) * CB + i * SB
        k, o = divmod(base, 65536)
        assert o + 1024 < 65536 + 1024
        ob = base
        kb, imm = divmod(ob, 65536)
        g.lds(f"ds_read_b128 v[{st}:{st+3}], v{vRB+kb} offset:{imm}", f"r{q}")
        for w in range(NW):
            oa = base + w * c.tile_stride * 1024
            for half in range(2):
                ka, imm = divmod(oa + 512*half, 65536)
                d = st + 4 + 4*w + 2*half
                g.lds(f"ds_read_b64_tr_b16 v[{d}:{d+1}], v{vRA+ka} offset:{imm}", f"r{q}")
    def mfmas(q):
        st = fr + (q % nset) * FS
        for w in range(NW):
            a = acc + 16*w
            cin = "0" if q == 0 else f"v[{a}:{a+15}]"
            A = f"v[{st+4+4*w}:{st+7+4*w}]"; B = f"v[{st}:{st+3}]"
            if c.swapped[w]:
                A, B = B, A
            g(f"v_mfma_f32_32x32x16_bf16 v[{a}:{a+15}], {A}, {B}, {cin}")
    g.wait_vm("d0")
    g("s_barrier")
    for q in range(min(LA, KS)):
        reads(q)
    for ch in range(NC):
        if ch + 1 < NC:
            g.wait_vm(f"d{ch+1}")
            g("s_barrier")
            if ch >= 1 and ch + NB - 1 < NC and ch + NB - 1 >= nup:
                dma(ch + NB - 1)
        for i in range(4):
            q = 4*ch + i
            if q + LA < KS:
                reads(q + LA)
            g.wait_lg(f"r{q}")
            mfmas(q)

def load_stats(g, c, V, off, tag):
    st = V['st']
    g(f"""
    s_lshl_b32 s{S_TMP}, s{S_T}, 12
    s_add_u32 s{S_TMP}, s{S_TMP}, {off}
    v_lshlrev_b32 v{V['t0']}, 2, v0
    v_add_u32 v{V['t0']}, s{S_TMP}, v{V['t0']}
    """)
    for p in range(16):
        g.vmem(f"buffer_load_dword v{st+p}, v{V['t0']}, s[{S_WS}:{S_WS+3}], 0 offen offset:{256*p}", tag)

def reduce_stats(g, V, vm, vvar):
    st = V['st']
    for k in (8, 4, 2, 1):
        for i in range(k):
            g(f"v_add_f32 v{st+i}, v{st+i}, v{st+i+k}")
    g(f"v_mov_b32 v{st+1}, v{st}")
    g("s_nop 1")
    g(f"v_permlane32_swap_b32 v{st}, v{st+1}")
    g("s_nop 1")
    g(f"v_mul_f32 v{vm}, {fl(1.0/D)}, v{st}")
    g(f"v_mul_f32 v{vvar}, {fl(1.0/D)}, v{st+1}")
    g(f"v_fma_f32 v{vvar}, -v{vm}, v{vm}, v{vvar}")
    g(f"v_max_f32 v{vvar}, 0, v{vvar}")

def rsq_eps(g, dst, src):
    g(f"v_add_f32 v{dst}, {fl(EPS)}, v{src}")
    g(f"v_rsq_f32 v{dst}, v{dst}")
    g("s_nop 0")

def load_frag2(g, V, dst, ws_off, nslab_t, slab_s_expr_sreg, tag):
    g(f"""
    s_mul_i32 s{S_TMP}, s{S_T}, {nslab_t*1024}
    s_lshl_b32 s{S_TMP+1}, s{slab_s_expr_sreg}, 10
    s_add_u32 s{S_TMP}, s{S_TMP}, s{S_TMP+1}
    s_add_u32 s{S_TMP}, s{S_TMP}, {ws_off}
    v_lshlrev_b32 v{V['t0']}, 4, v0
    v_add_u32 v{V['t0']}, s{S_TMP}, v{V['t0']}
    """)
    g.vmem(f"buffer_load_dwordx4 v[{dst}:{dst+3}], v{V['t0']}, s[{S_WS}:{S_WS+3}], 0 offen", tag)
    g.vmem(f"buffer_load_dwordx4 v[{dst+4}:{dst+7}], v{V['t0']}, s[{S_WS}:{S_WS+3}], 0 offen offset:1024", tag)

def load_cs(g, V, dst, cs_off_sreg, tag, imm_tile=0):
    g(f"""
    v_lshrrev_b32 v{V['t0']}, 5, v0
    v_lshlrev_b32 v{V['t0']}, 4, v{V['t0']}
    v_add_u32 v{V['t0']}, s{cs_off_sreg}, v{V['t0']}
    """)
    for gq in range(4):
        g.vmem(f"buffer_load_dwordx4 v[{dst+4*gq}:{dst+4*gq+3}], v{V['t0']}, s[{S_WS}:{S_WS+3}], 0 offen offset:{imm_tile*128 + 32*gq}", tag)

def stats_partial_store(g, V, vals, ws_off, part_sreg):
    a, b = V['t0'], V['t0'] + 2
    g(f"v_pk_add_f32 v[{a}:{a+1}], v[{vals}:{vals+1}], v[{vals+2}:{vals+3}]")
    g(f"v_pk_mul_f32 v[{b}:{b+1}], v[{vals}:{vals+1}], v[{vals}:{vals+1}]")
    g(f"v_pk_fma_f32 v[{b}:{b+1}], v[{vals+2}:{vals+3}], v[{vals+2}:{vals+3}], v[{b}:{b+1}]")
    for i in range(4, 16, 2):
        g(f"v_pk_add_f32 v[{a}:{a+1}], v[{a}:{a+1}], v[{vals+i}:{vals+i+1}]")
        g(f"v_pk_fma_f32 v[{b}:{b+1}], v[{vals+i}:{vals+i+1}], v[{vals+i}:{vals+i+1}], v[{b}:{b+1}]")
    g(f"v_add_f32 v{a}, v{a}, v{a+1}")
    g(f"v_add_f32 v{a+1}, v{b}, v{b+1}")
    g("s_nop 1")
    g(f"v_permlane32_swap_b32 v{a}, v{a+1}")
    g("s_nop 1")
    g(f"v_add_f32 v{a}, v{a}, v{a+1}")
    g(f"""
    s_lshl_b32 s{S_TMP}, s{S_T}, 12
    s_lshl_b32 s{S_TMP+1}, s{part_sreg}, 8
    s_add_u32 s{S_TMP}, s{S_TMP}, s{S_TMP+1}
    s_add_u32 s{S_TMP}, s{S_TMP}, {ws_off}
    v_lshlrev_b32 v{b}, 2, v0
    v_add_u32 v{b}, s{S_TMP}, v{b}
    """)
    g.vmem(f"buffer_store_dword v{a}, v{b}, s[{S_WS}:{S_WS+3}], 0 offen", "st")

def pack_store_F(g, V, vals, addr_reg, pk, imm0=0, srd_s=S_WS):
    for i in range(8):
        g(f"v_cvt_pk_bf16_f32 v{pk+i}, v{vals+2*i}, v{vals+2*i+1}")
    g.vmem(f"buffer_store_dwordx4 v[{pk}:{pk+3}], v{addr_reg}, s[{srd_s}:{srd_s+3}], 0 offen offset:{imm0}", "st")
    g.vmem(f"buffer_store_dwordx4 v[{pk+4}:{pk+7}], v{addr_reg}, s[{srd_s}:{srd_s+3}], 0 offen offset:{imm0+1024}", "st")

def f_addr(g, V, dst, ws_off, nslab_t, slab_sreg):
    g(f"""
    s_mul_i32 s{S_TMP}, s{S_T}, {nslab_t*1024}
    s_lshl_b32 s{S_TMP+1}, s{slab_sreg}, 10
    s_add_u32 s{S_TMP}, s{S_TMP}, s{S_TMP+1}
    s_add_u32 s{S_TMP}, s{S_TMP}, {ws_off}
    v_lshlrev_b32 v{dst}, 4, v0
    v_add_u32 v{dst}, s{S_TMP}, v{dst}
    """)

def gelu16(g, V, u, tmp):
    gc = V['gc']
    for i in range(0, 16, 2):
        g(f"v_pk_mul_f32 v[{tmp+i}:{tmp+i+1}], v[{u+i}:{u+i+1}], v[{u+i}:{u+i+1}]")
    for i in range(0, 16, 2):
        g(f"v_pk_fma_f32 v[{tmp+i}:{tmp+i+1}], v[{tmp+i}:{tmp+i+1}], v[{gc}:{gc+1}], v[{gc}:{gc+1}] op_sel:[0,1,0] op_sel_hi:[1,1,0]")
    for i in range(0, 16, 2):
        g(f"v_pk_mul_f32 v[{tmp+i}:{tmp+i+1}], v[{tmp+i}:{tmp+i+1}], v[{u+i}:{u+i+1}]")
    for i in range(16):
        g(f"v_exp_f32 v{tmp+i}, v{tmp+i}")
    for i in range(0, 16, 2):
        g(f"v_pk_add_f32 v[{tmp+i}:{tmp+i+1}], v[{tmp+i}:{tmp+i+1}], 1.0 op_sel_hi:[1,0]")
    for i in range(16):
        g(f"v_rcp_f32 v{tmp+i}, v{tmp+i}")
    for i in range(0, 16, 2):
        g(f"v_pk_mul_f32 v[{u+i}:{u+i+1}], v[{u+i}:{u+i+1}], v[{tmp+i}:{tmp+i+1}]")

def mfma_drain(g):
    g("s_nop 15")

def ln_affine(g, acc, cs, vneg_m_a, va):
    assert vneg_m_a == va + 1
    for i in range(0, 16, 2):
        g(f"v_pk_mul_f32 v[{cs+i}:{cs+i+1}], v[{cs+i}:{cs+i+1}], v[{va}:{va+1}] op_sel:[0,1] op_sel_hi:[1,1]")
    for i in range(0, 16, 2):
        g(f"v_pk_fma_f32 v[{acc+i}:{acc+i+1}], v[{acc+i}:{acc+i+1}], v[{va}:{va+1}], v[{cs+i}:{cs+i+1}] op_sel:[0,0,0] op_sel_hi:[1,0,1]")

def unpack8(g, dst, src):
    for i in range(8):
        unpack_lo(g, dst+2*i, src+i)
        unpack_hi(g, dst+2*i+1, src+i)

def base_regs(c, extra):
    V = {}
    n = 1
    def al(name, cnt, align=1):
        nonlocal n
        n = (n + align - 1) // align * align
        V[name] = n; n += cnt
    al('t0', 6, 2)
    al('vB', 8 if c.shift else 2)
    al('vA', 1)
    nbase = (c.NB * 4 * (2 + c.NTn) * 1024 + 65535) // 65536
    al('vRA', nbase); al('vRB', nbase)
    al('frag', (c.LA + 1) * (4*c.NW + 4), 4)
    al('acc', 16 * c.NW, 4)
    for name, cnt, align in extra:
        al(name, cnt, align)
    V['_n'] = n
    return V

def finish(g, name, c, V):
    g(f"L_{name}_end:")
    g("s_endpgm")
    lds = c.NB * 4 * (2 + c.NTn) * 1024
    return g.text() + kernel_desc(name, max(V['_n'], 32), 64), dict(name=name, grid=256, block=256, lds=lds)

def cfg512(w_ka, b_off, KS=32, shift=False):
    c = Cfg()
    c.w_ka = w_ka; c.KS = KS; c.NTn = 2; c.NB = 8; c.NW = 1; c.LA = 4
    c.w_row = D * 2; c.w_bytes = KS * 16 * D * 2; c.col_j = 128; c.offs = [0, 64]
    c.ng_stride = 1; c.tile_stride = 1; c.swapped = [False]
    c.b_off = b_off; c.shift = shift; c.need_out = False
    return c

def slab_sreg(g, sreg):
    g(f"s_lshl_b32 s{sreg}, s{S_J}, 1")
    g(f"s_add_u32 s{sreg}, s{sreg}, s{S_NG}")
    g(f"s_lshl_b32 s{sreg+1}, s{sreg}, 1")

S_PART, S_SLAB = 44, 45

def wo_kernel(name):
    c = cfg512(KA_WO, WS_O)
    V = base_regs(c, [('res', 8, 4), ('val', 16, 4), ('pk', 8, 4), ('ad', 1, 1)])
    def epi_loads(g, c, V):
        slab_sreg(g, S_PART)
        load_frag2(g, V, V['res'], WS_X, 32, S_SLAB, "res")
    c.epi_loads = epi_loads
    g = Gen(); gemm_prologue(g, name, c); gemm_main(g, name, c, V)
    val, acc = V['val'], V['acc']
    g.wait_vm("res")
    unpack8(g, val, V['res'])
    f_addr(g, V, V['ad'], WS_X1, 32, S_SLAB)
    mfma_drain(g)
    for i in range(0, 16, 2):
        g(f"v_pk_add_f32 v[{val+i}:{val+i+1}], v[{val+i}:{val+i+1}], v[{acc+i}:{acc+i+1}]")
    pack_store_F(g, V, val, V['ad'], V['pk'])
    stats_partial_store(g, V, val, WS_SX1, S_PART)
    return finish(g, name, c, V)

def w1_kernel(name):
    c = cfg512(KA_W1, WS_X1)
    V = base_regs(c, [('st', 16, 4), ('cs', 16, 4), ('tmp', 16, 4), ('pk', 8, 4), ('ab', 2, 2), ('gc', 2, 2), ('mv', 4, 2), ('ad', 1, 1)])
    def epi_loads(g, c, V):
        slab_sreg(g, S_PART)
        load_stats(g, c, V, WS_SX1, "st")
        g(f"s_lshl_b32 s{S_TMP+3}, s{S_PART}, 7")
        g(f"s_add_u32 s{S_TMP+3}, s{S_TMP+3}, {WS_CS1}")
        load_cs(g, V, V['cs'], S_TMP+3, "cs")
    c.epi_loads = epi_loads
    g = Gen(); gemm_prologue(g, name, c); gemm_main(g, name, c, V)
    acc, ab, mv = V['acc'], V['ab'], V['mv']
    g.wait_vm(["st", "cs"])
    reduce_stats(g, V, mv, mv+1)
    rsq_eps(g, mv+2, mv+1)
    g(f"v_mul_f32 v{mv+3}, v{mv+2}, v{mv+2}")
    g(f"v_mul_f32 v{mv+3}, v{mv+3}, v{mv+1}")
    rsq_eps(g, mv+3, mv+3)
    g(f"v_mul_f32 v{ab}, v{mv+2}, v{mv+3}")
    g(f"v_mul_f32 v{ab+1}, -v{mv}, v{ab}".replace("v_mul_f32", "v_mul_f32_e64"))
    g(f"v_mov_b32 v{V['gc']}, {fl(GELU_C0)}")
    g(f"v_mov_b32 v{V['gc']+1}, {fl(GELU_C1)}")
    g(f"""
    s_or_b32 s{S_TMP}, s{S_J}, s{S_NG}
    s_cmp_lg_u32 s{S_TMP}, 0
    s_cbranch_scc1 L_{name}_noexp
    v_cmp_gt_u32 vcc, 32, v0
    v_lshlrev_b32 v{V['t0']+1}, 2, v0
    s_lshl_b32 s{S_TMP}, s{S_T}, 8
    s_add_u32 s{S_TMP}, s{S_TMP}, {WS_MR}
    v_cndmask_b32 v{V['t0']}, v{mv+2}, v{mv}, vcc
    v_add_u32 v{V['t0']+1}, s{S_TMP}, v{V['t0']+1}
    buffer_store_dword v{V['t0']}, v{V['t0']+1}, s[{S_WS}:{S_WS+3}], 0 offen
    L_{name}_noexp:
    """)
    f_addr(g, V, V['ad'], WS_H, 32, S_SLAB)
    mfma_drain(g)
    ln_affine(g, acc, V['cs'], ab+1, ab)
    gelu16(g, V, acc, V['tmp'])
    pack_store_F(g, V, acc, V['ad'], V['pk'])
    return finish(g, name, c, V)

def w2_kernel(name):
    c = cfg512(KA_W2, WS_H, shift=True)
    V = base_regs(c, [('res', 8, 4), ('val', 16, 4), ('pk', 8, 4), ('mr', 2, 2), ('ab', 2, 2), ('ad', 1, 1)])
    def epi_loads(g, c, V):
        slab_sreg(g, S_PART)
        load_frag2(g, V, V['res'], WS_X1, 32, S_SLAB, "res")
        g(f"""
        s_lshl_b32 s{S_TMP}, s{S_T}, 8
        s_add_u32 s{S_TMP}, s{S_TMP}, {WS_MR}
        v_and_b32 v{V['t0']}, 31, v0
        v_lshlrev_b32 v{V['t0']}, 2, v{V['t0']}
        v_add_u32 v{V['t0']}, s{S_TMP}, v{V['t0']}
        """)
        g.vmem(f"buffer_load_dword v{V['mr']}, v{V['t0']}, s[{S_WS}:{S_WS+3}], 0 offen", "res")
        g.vmem(f"buffer_load_dword v{V['mr']+1}, v{V['t0']}, s[{S_WS}:{S_WS+3}], 0 offen offset:128", "res")
    c.epi_loads = epi_loads
    g = Gen(); gemm_prologue(g, name, c); gemm_main(g, name, c, V)
    val, acc, ab, mr = V['val'], V['acc'], V['ab'], V['mr']
    g.wait_vm("res")
    unpack8(g, val, V['res'])
    g(f"v_mov_b32 v{ab}, v{mr+1}")
    g(f"v_mul_f32_e64 v{ab+1}, -v{mr}, v{mr+1}")
    f_addr(g, V, V['ad'], WS_Y, 32, S_SLAB)
    for i in range(0, 16, 2):
        g(f"v_pk_fma_f32 v[{val+i}:{val+i+1}], v[{val+i}:{val+i+1}], v[{ab}:{ab+1}], v[{ab}:{ab+1}] op_sel:[0,0,1] op_sel_hi:[1,0,1]")
    mfma_drain(g)
    for i in range(0, 16, 2):
        g(f"v_pk_add_f32 v[{val+i}:{val+i+1}], v[{val+i}:{val+i+1}], v[{acc+i}:{acc+i+1}]")
    pack_store_F(g, V, val, V['ad'], V['pk'])
    stats_partial_store(g, V, val, WS_SY, S_PART)
    return finish(g, name, c, V)

def w3_kernel(name):
    c = Cfg()
    c.w_ka = KA_W3; c.KS = 32; c.NTn = 7; c.NB = 4; c.NW = 4; c.LA = 1
    c.w_row = F * 2; c.w_bytes = D * F * 2; c.col_j = 448; c.offs = [64*i for i in range(7)]
    c.ng_stride = 3; c.tile_stride = 1; c.swapped = [False]*4
    c.b_off = WS_Y; c.shift = False; c.need_out = False
    V = base_regs(c, [('st', 16, 4), ('cs', 64, 4), ('tmp', 16, 4), ('pk', 8, 4), ('ab', 2, 2), ('gc', 2, 2), ('mv', 4, 2), ('ad', 1, 1)])
    def epi_loads(g, c, V):
        g(f"s_mul_i32 s{S_PART}, s{S_J}, 7")
        g(f"s_mul_i32 s{S_TMP}, s{S_NG}, 3")
        g(f"s_add_u32 s{S_PART}, s{S_PART}, s{S_TMP}")
        g(f"s_lshl_b32 s{S_SLAB}, s{S_PART}, 1")
        load_stats(g, c, V, WS_SY, "st")
        g(f"s_lshl_b32 s{S_TMP+3}, s{S_PART}, 7")
        g(f"s_add_u32 s{S_TMP+3}, s{S_TMP+3}, {WS_CS3}")
        for w in range(4):
            load_cs(g, V, V['cs'] + 16*w, S_TMP+3, "cs", imm_tile=w)
    c.epi_loads = epi_loads
    g = Gen(); gemm_prologue(g, name, c); gemm_main(g, name, c, V)
    acc, ab, mv = V['acc'], V['ab'], V['mv']
    g.wait_vm(["st", "cs"])
    reduce_stats(g, V, mv, mv+1)
    rsq_eps(g, ab, mv+1)
    g(f"v_mul_f32_e64 v{ab+1}, -v{mv}, v{ab}")
    g(f"v_mov_b32 v{V['gc']}, {fl(GELU_C0)}")
    g(f"v_mov_b32 v{V['gc']+1}, {fl(GELU_C1)}")
    f_addr(g, V, V['ad'], WS_G, 112, S_SLAB)
    mfma_drain(g)
    for w in range(4):
        ln_affine(g, acc+16*w, V['cs']+16*w, ab+1, ab)
        gelu16(g, V, acc+16*w, V['tmp'])
        pack_store_F(g, V, acc+16*w, V['ad'], V['pk'])
        if w < 3:
            g(f"v_add_u32 v{V['ad']}, 2048, v{V['ad']}")
            g("s_nop 0")
    return finish(g, name, c, V)

def w4_kernel(name, final):
    c = cfg512(KA_W4, WS_G, KS=112)
    c.need_out = final
    V = base_regs(c, [('res', 8, 4), ('res2', 8, 4), ('val', 16, 4), ('val2', 16, 4), ('pk', 8, 4), ('ad', 1, 1)])
    def epi_loads(g, c, V):
        slab_sreg(g, S_PART)
        load_frag2(g, V, V['res'], WS_X1, 32, S_SLAB, "res")
        load_frag2(g, V, V['res2'], WS_Y, 32, S_SLAB, "res")
    c.epi_loads = epi_loads
    g = Gen(); gemm_prologue(g, name, c); gemm_main(g, name, c, V)
    val, val2, acc, pk = V['val'], V['val2'], V['acc'], V['pk']
    g.wait_vm("res")
    unpack8(g, val, V['res'])
    unpack8(g, val2, V['res2'])
    mfma_drain(g)
    for i in range(0, 16, 2):
        g(f"v_pk_add_f32 v[{val2+i}:{val2+i+1}], v[{val2+i}:{val2+i+1}], v[{acc+i}:{acc+i+1}]")
    for i in range(0, 16, 2):
        g(f"v_pk_add_f32 v[{val+i}:{val+i+1}], v[{val+i}:{val+i+1}], v[{val2+i}:{val2+i+1}]")
    if not final:
        f_addr(g, V, V['ad'], WS_X, 32, S_SLAB)
        pack_store_F(g, V, val, V['ad'], V['pk'])
        stats_partial_store(g, V, val, WS_SX, S_PART)
    else:
        t0 = V['t0']
        g(f"""
        s_lshl_b32 s{S_TMP}, s{S_T}, 15
        s_lshl_b32 s{S_TMP+1}, s{S_PART}, 6
        s_add_u32 s{S_TMP}, s{S_TMP}, s{S_TMP+1}
        v_and_b32 v{t0}, 31, v0
        v_lshlrev_b32 v{t0}, 10, v{t0}
        v_lshrrev_b32 v{t0+1}, 5, v0
        v_lshl_add_u32 v{t0}, v{t0+1}, 4, v{t0}
        v_add_u32 v{V['ad']}, s{S_TMP}, v{t0}
        """)
        for i in range(8):
            g(f"v_cvt_pk_bf16_f32 v{pk+i}, v{val+2*i}, v{val+2*i+1}")
        g("s_nop 1")
        for sl in range(2):
            b = pk + 4*sl
            g(f"v_permlane32_swap_b32 v{b}, v{b+2}")
            g(f"v_permlane32_swap_b32 v{b+1}, v{b+3}")
        g("s_nop 1")
        for sl in range(2):
            b = pk + 4*sl
            g.vmem(f"buffer_store_dwordx4 v[{b}:{b+3}], v{V['ad']}, s[{S_OUT}:{S_OUT+3}], 0 offen offset:{32*sl}", "st")
    return finish(g, name, c, V)

QSCALE = 0.25 * LOG2E

def qkv_kernel(name):
    c = Cfg()
    c.w_ka = KA_WQKV; c.KS = 32; c.NTn = 6; c.NB = 4; c.NW = 3; c.LA = 2
    c.w_row = 3 * D * 2; c.w_bytes = D * 3 * D * 2; c.col_j = 128; c.offs = [0, 64, 1024, 1088, 2048, 2112]
    c.ng_stride = 1; c.tile_stride = 2; c.swapped = [False, False, True]
    c.b_off = WS_X; c.shift = False; c.need_out = False
    V = base_regs(c, [('st', 16, 4), ('cs', 32, 4), ('csv', 1, 1), ('pk', 8, 4), ('ab', 2, 2), ('abq', 2, 2), ('mv', 4, 2), ('ad', 1, 1), ('rowa', 16, 4), ('rowb', 16, 4)])
    def epi_loads(g, c, V):
        slab_sreg(g, S_PART)
        load_stats(g, c, V, WS_SX, "st")
        g(f"s_lshl_b32 s{S_TMP+3}, s{S_PART}, 7")
        g(f"s_add_u32 s{S_TMP+3}, s{S_TMP+3}, {WS_CSQ}")
        load_cs(g, V, V['cs'], S_TMP+3, "cs")
        g(f"s_add_u32 s{S_TMP+3}, s{S_TMP+3}, 2048")
        load_cs(g, V, V['cs']+16, S_TMP+3, "cs")
        g(f"s_add_u32 s{S_TMP+3}, s{S_TMP+3}, 2048")
        g(f"v_and_b32 v{V['t0']}, 31, v0")
        g(f"v_lshlrev_b32 v{V['t0']}, 2, v{V['t0']}")
        g(f"v_add_u32 v{V['t0']}, s{S_TMP+3}, v{V['t0']}")
        g.vmem(f"buffer_load_dword v{V['csv']}, v{V['t0']}, s[{S_WS}:{S_WS+3}], 0 offen", "cs")
    c.epi_loads = epi_loads
    g = Gen(); gemm_prologue(g, name, c); gemm_main(g, name, c, V)
    acc, ab, abq, mv, t0, pk = V['acc'], V['ab'], V['abq'], V['mv'], V['t0'], V['pk']
    g.wait_vm(["st", "cs"])
    reduce_stats(g, V, mv, mv+1)
    rsq_eps(g, ab, mv+1)
    g(f"v_mul_f32_e64 v{ab+1}, -v{mv}, v{ab}")
    g(f"v_mul_f32 v{abq}, {fl(QSCALE)}, v{ab}")
    g(f"v_mul_f32 v{abq+1}, {fl(QSCALE)}, v{ab+1}")
    g("s_waitcnt lgkmcnt(0)")
    g("s_barrier")
    g(f"""
    s_lshl_b32 s{S_TMP}, s{S_WAVE}, 8
    v_and_b32 v{t0}, 31, v0
    v_lshlrev_b32 v{t0}, 2, v{t0}
    v_add_u32 v{t0}, s{S_TMP}, v{t0}
    ds_write_b32 v{t0}, v{ab}
    ds_write_b32 v{t0}, v{ab+1} offset:128
    v_lshrrev_b32 v{t0+1}, 5, v0
    v_lshlrev_b32 v{t0+1}, 4, v{t0+1}
    v_add_u32 v{t0+1}, s{S_TMP}, v{t0+1}
    s_waitcnt lgkmcnt(0)
    """)
    for gq in range(4):
        g(f"ds_read_b128 v[{V['rowa']+4*gq}:{V['rowa']+4*gq+3}], v{t0+1} offset:{32*gq}")
        g(f"ds_read_b128 v[{V['rowb']+4*gq}:{V['rowb']+4*gq+3}], v{t0+1} offset:{128+32*gq}")
    g(f"""
    s_lshl_b32 s{S_TMP}, s{S_PART}, 17
    s_lshl_b32 s{S_TMP+1}, s{S_T}, 10
    s_add_u32 s{S_TMP+2}, s{S_TMP}, s{S_TMP+1}
    v_lshlrev_b32 v{V['ad']}, 4, v0
    v_add_u32 v{V['ad']}, s{S_TMP+2}, v{V['ad']}
    """)
    mfma_drain(g)
    def store_heads(vals, ws_off):
        for i in range(8):
            g(f"v_cvt_pk_bf16_f32 v{pk+i}, v{vals+2*i}, v{vals+2*i+1}")
        g(f"s_mov_b32 s{S_TMP+4}, {ws_off}")
        g(f"s_mov_b32 s{S_TMP+5}, {ws_off + 65536}")
        g.vmem(f"buffer_store_dwordx4 v[{pk}:{pk+3}], v{V['ad']}, s[{S_WS}:{S_WS+3}], s{S_TMP+4} offen", "st")
        g.vmem(f"buffer_store_dwordx4 v[{pk+4}:{pk+7}], v{V['ad']}, s[{S_WS}:{S_WS+3}], s{S_TMP+5} offen", "st")
        g("s_nop 1")
    ln_affine(g, acc, V['cs'], abq+1, abq)
    store_heads(acc, WS_Q)
    k = acc + 16
    ln_affine(g, k, V['cs']+16, ab+1, ab)
    store_heads(k, WS_K)
    g(f"v_pk_mul_f32 v[{t0}:{t0+1}], v[{k}:{k+1}], v[{k}:{k+1}]")
    g(f"v_pk_mul_f32 v[{t0+2}:{t0+3}], v[{k+8}:{k+9}], v[{k+8}:{k+9}]")
    for i in range(2, 8, 2):
        g(f"v_pk_fma_f32 v[{t0}:{t0+1}], v[{k+i}:{k+i+1}], v[{k+i}:{k+i+1}], v[{t0}:{t0+1}]")
        g(f"v_pk_fma_f32 v[{t0+2}:{t0+3}], v[{k+8+i}:{k+8+i+1}], v[{k+8+i}:{k+8+i+1}], v[{t0+2}:{t0+3}]")
    g(f"v_add_f32 v{t0}, v{t0}, v{t0+1}")
    g(f"v_add_f32 v{t0+1}, v{t0+2}, v{t0+3}")
    g("s_nop 1")
    g(f"v_permlane32_swap_b32 v{t0}, v{t0+1}")
    g("s_nop 1")
    g(f"v_add_f32 v{t0}, v{t0}, v{t0+1}")
    for ror in (8, 4, 2, 1):
        g("s_nop 1")
        g(f"v_max_f32_dpp v{t0}, v{t0}, v{t0} row_ror:{ror} row_mask:0xf bank_mask:0xf")
    g(f"v_mov_b32 v{t0+1}, v{t0}")
    g("s_nop 1")
    g(f"v_permlane16_swap_b32 v{t0}, v{t0+1}")
    g("s_nop 1")
    g(f"v_max_f32 v{t0}, v{t0}, v{t0+1}")
    g(f"""
    s_lshl_b32 s{S_TMP}, s{S_PART}, 9
    s_lshl_b32 s{S_TMP+1}, s{S_T}, 2
    s_add_u32 s{S_TMP}, s{S_TMP}, s{S_TMP+1}
    s_add_u32 s{S_TMP}, s{S_TMP}, {WS_KN}
    v_lshrrev_b32 v{t0+1}, 5, v0
    v_lshlrev_b32 v{t0+1}, 8, v{t0+1}
    v_add_u32 v{t0+1}, s{S_TMP}, v{t0+1}
    s_mov_b64 s[{S_EXEC}:{S_EXEC+1}], exec
    s_mov_b32 exec_lo, 1
    s_mov_b32 exec_hi, 1
    buffer_store_dword v{t0}, v{t0+1}, s[{S_WS}:{S_WS+3}], 0 offen
    s_mov_b64 exec, s[{S_EXEC}:{S_EXEC+1}]
    """)
    v = acc + 32
    g("s_waitcnt lgkmcnt(0)")
    for i in range(0, 16, 2):
        g(f"v_pk_mul_f32 v[{V['rowb']+i}:{V['rowb']+i+1}], v[{V['rowb']+i}:{V['rowb']+i+1}], v[{V['csv']&~1}:{(V['csv']&~1)+1}] op_sel:[0,{V['csv']&1}] op_sel_hi:[1,{V['csv']&1}]")
    for i in range(0, 16, 2):
        g(f"v_pk_fma_f32 v[{v+i}:{v+i+1}], v[{v+i}:{v+i+1}], v[{V['rowa']+i}:{V['rowa']+i+1}], v[{V['rowb']+i}:{V['rowb']+i+1}]")
    for i in range(8):
        g(f"v_cvt_pk_bf16_f32 v{pk+i}, v{v+2*i}, v{v+2*i+1}")
    g(f"""
    v_bfe_u32 v{t0}, v0, 4, 1
    v_lshlrev_b32 v{t0}, 16, v{t0}
    v_lshrrev_b32 v{t0+1}, 5, v0
    v_lshl_add_u32 v{t0}, v{t0+1}, 8, v{t0}
    v_and_b32 v{t0+1}, 15, v0
    v_lshl_add_u32 v{t0}, v{t0+1}, 4, v{t0}
    s_add_u32 s{S_TMP+2}, s{S_TMP+2}, 0
    s_lshl_b32 s{S_TMP}, s{S_PART}, 17
    s_lshl_b32 s{S_TMP+1}, s{S_T}, 10
    s_add_u32 s{S_TMP}, s{S_TMP}, s{S_TMP+1}
    s_add_u32 s{S_TMP}, s{S_TMP}, {WS_V}
    v_add_u32 v{t0}, s{S_TMP}, v{t0}
    """)
    g.vmem(f"buffer_store_dwordx4 v[{pk}:{pk+3}], v{t0}, s[{S_WS}:{S_WS+3}], 0 offen", "st")
    g.vmem(f"buffer_store_dwordx4 v[{pk+4}:{pk+7}], v{t0}, s[{S_WS}:{S_WS+3}], 0 offen offset:512", "st")
    return finish(g, name, c, V)
```

```python
from common import *

def prep_kernel(name):
    g = Gen()
    g(kernel_header(name))
    g(f"""
    s_cmp_ge_u32 s2, 124
    s_cbranch_scc1 L_{name}_end
    s_load_dwordx2 s[4:5], s[0:1], {KA_X}
    s_load_dwordx2 s[6:7], s[0:1], {KA_WS}
    s_load_dwordx2 s[24:25], s[0:1], {KA_WQKV}
    s_load_dwordx2 s[26:27], s[0:1], {KA_W1}
    s_load_dwordx2 s[28:29], s[0:1], {KA_W3}
    v_lshrrev_b32 v1, 6, v0
    v_and_b32 v2, 63, v0                 ; lane
    s_nop 0
    v_readfirstlane_b32 s22, v1          ; wave
    s_waitcnt lgkmcnt(0)
    """)
    srd(g, 12, 6, 7, WS_USED)
    g(f"""
    s_cmp_ge_u32 s2, 64
    s_cbranch_scc1 L_{name}_cs
    """)
    srd(g, 8, 4, 5, S * D * 2)
    g(f"""
    v_and_b32 v3, 31, v2                 ; t
    v_lshrrev_b32 v4, 5, v2              ; h
    s_lshl_b32 s16, s2, 5                ; 32*T
    v_add_u32 v5, s16, v3                ; row
    v_lshlrev_b32 v5, 10, v5             ; row*1024
    v_lshl_add_u32 v5, v4, 4, v5         ; + 16h
    s_lshl_b32 s17, s22, 8               ; 256*w
    v_add_u32 v5, s17, v5
    """)
    for i in range(8):
        g.vmem(f"buffer_load_dwordx4 v[{16+4*i}:{19+4*i}], v5, s[8:11], 0 offen offset:{32*i}", f"x{i}")
    g(f"""
    s_lshl_b32 s16, s2, 15
    s_lshl_b32 s17, s22, 13
    s_add_u32 s16, s16, s17
    s_add_u32 s16, s16, {WS_X}
    v_lshlrev_b32 v6, 4, v2
    v_add_u32 v6, s16, v6
    s_lshl_b32 s16, s2, 12               ; T*4096
    s_lshl_b32 s17, s22, 10              ; (4w)*256
    s_add_u32 s16, s16, s17
    s_add_u32 s16, s16, {WS_SX}
    v_lshlrev_b32 v7, 2, v2
    v_add_u32 v7, s16, v7
    """)
    for pair in range(4):
        g.wait_vm([f"x{2*pair}", f"x{2*pair+1}"])
        first = True
        for i in (2*pair, 2*pair+1):
            b = 16 + 4*i
            for r in range(4):
                g(f"v_lshlrev_b32 v8, 16, v{b+r}")
                g(f"v_and_b32 v9, 0xffff0000, v{b+r}")
                if first:
                    g("v_add_f32 v10, v8, v9")
                    g("v_mul_f32 v11, v8, v8")
                    g("v_fmac_f32 v11, v9, v9")
                    first = False
                else:
                    g("v_add_f32 v10, v10, v8")
                    g("v_fmac_f32 v11, v8, v8")
                    g("v_add_f32 v10, v10, v9")
                    g("v_fmac_f32 v11, v9, v9")
        g("s_nop 1")
        g("v_permlane32_swap_b32 v10, v11")
        g("s_nop 1")
        g("v_add_f32 v10, v10, v11")
        g.vmem(f"buffer_store_dword v10, v7, s[12:15], 0 offen offset:{256*pair}", "st")
        for i in (2*pair, 2*pair+1):
            b = 16 + 4*i
            g(f"v_permlane32_swap_b32 v{b}, v{b+2}")
            g(f"v_permlane32_swap_b32 v{b+1}, v{b+3}")
        for i in (2*pair, 2*pair+1):
            b = 16 + 4*i
            if i % 4 == 0 and i > 0:
                g(f"v_add_u32 v6, 4096, v6")
            g.vmem(f"buffer_store_dwordx4 v[{b}:{b+3}], v6, s[12:15], 0 offen offset:{1024*(i%4)}", "st")
    g("s_endpgm")
    g(f"L_{name}_cs:")
    g(f"""
    s_sub_u32 s16, s2, 64                ; cb
    s_cmp_ge_u32 s16, 24
    s_cbranch_scc1 L_{name}_cs1
    """)
    srd(g, 8, 24, 25, D * 3 * D * 2)
    g(f"""
    s_mov_b32 s17, {3*D*2}               ; rowbytes
    s_lshl_b32 s18, s16, 7
    s_lshl_b32 s19, s16, 8
    s_add_u32 s19, s19, {WS_CSQ}
    s_branch L_{name}_csgo
    L_{name}_cs1:
    s_cmp_ge_u32 s16, 32
    s_cbranch_scc1 L_{name}_cs3
    s_sub_u32 s16, s16, 24
    """)
    srd(g, 8, 26, 27, D * D * 2)
    g(f"""
    s_mov_b32 s17, {D*2}
    s_lshl_b32 s18, s16, 7
    s_lshl_b32 s19, s16, 8
    s_add_u32 s19, s19, {WS_CS1}
    s_branch L_{name}_csgo
    L_{name}_cs3:
    s_sub_u32 s16, s16, 32
    """)
    srd(g, 8, 28, 29, D * F * 2)
    g(f"""
    s_mov_b32 s17, {F*2}
    s_lshl_b32 s18, s16, 7
    s_lshl_b32 s19, s16, 8
    s_add_u32 s19, s19, {WS_CS3}
    L_{name}_csgo:
    v_lshrrev_b32 v3, 5, v0              ; kq 0..7
    v_and_b32 v4, 31, v0                 ; cp
    v_lshlrev_b32 v5, 6, v3              ; 64*kq
    v_mul_lo_u32 v5, v5, s17
    v_lshl_add_u32 v5, v4, 2, v5
    v_add_u32 v5, s18, v5
    s_mov_b32 s20, 0
    """)
    g.vm = []
    for i in range(64):
        g.vmem(f"buffer_load_dword v{16+i}, v5, s[8:11], s20 offen", f"c{i}")
        if i < 63: g("s_add_u32 s20, s20, s17")
    g("v_mov_b32 v10, 0")
    g("v_mov_b32 v11, 0")
    for i in range(64):
        if i % 16 == 0:
            g.wait_vm([f"c{k}" for k in range(i, i+16)])
        g(f"v_lshlrev_b32 v8, 16, v{16+i}")
        g(f"v_and_b32 v9, 0xffff0000, v{16+i}")
        g("v_add_f32 v10, v10, v8")
        g("v_add_f32 v11, v11, v9")
    g(f"""
    v_lshlrev_b32 v6, 8, v3              ; kq*256
    v_lshl_add_u32 v6, v4, 3, v6         ; + cp*8
    ds_write_b64 v6, v[10:11]
    s_waitcnt lgkmcnt(0)
    s_barrier
    v_cmp_gt_u32 vcc, 64, v0
    s_and_saveexec_b64 s[30:31], vcc
    s_cbranch_execz L_{name}_end
    v_lshlrev_b32 v6, 2, v0
    """)
    for k in range(8):
        g(f"ds_read_b32 v{16+k}, v6 offset:{256*k}")
    g("s_waitcnt lgkmcnt(0)")
    for k in range(1, 8):
        g(f"v_add_f32 v16, v16, v{16+k}")
    g(f"""
    v_add_u32 v6, s19, v6
    buffer_store_dword v16, v6, s[12:15], 0 offen
    L_{name}_end:
    s_endpgm
    """)
    return g.text() + kernel_desc(name, 96, 48), dict(name=name, grid=124, block=256, lds=2048)
```

```python
import sys, os
sys.path.insert(0, os.path.dirname(os.path.abspath(__file__)))
from common import *
import prep, gemm, attn

NAME = "interleave_layers__softmax_full_mha__mixer_s_mlp__prompt"
HEADER = open("cdna_kernels/" + NAME + ".s.ref").read().split("; Override launch geometry")[0]

def build(extra_empty=0):
    ks = {}
    def add(t):
        ks[t[1]['name']] = t
        return t[1]['name']
    p = add(prep.prep_kernel("prep_kernel"))
    qkv = add(gemm.qkv_kernel("qkv_kernel"))
    at = add(attn.attn_kernel("attn_kernel"))
    wo = add(gemm.wo_kernel("wo_kernel"))
    w1 = add(gemm.w1_kernel("w1_kernel"))
    w2 = add(gemm.w2_kernel("w2_kernel"))
    w3 = add(gemm.w3_kernel("w3_kernel"))
    w4a = add(gemm.w4_kernel("w4a_kernel", False))
    w4b = add(gemm.w4_kernel("w4b_kernel", True))
    seq = [p, qkv, at, wo, w1, w2, w3, w4a, qkv, at, wo, w1, w2, w3, w4b]
    if extra_empty:
        em = f""".text
.globl empty_kernel
.p2align 8
.type empty_kernel,@function
empty_kernel:
    s_endpgm
""" + kernel_desc("empty_kernel", 8, 16)
        ks["empty_kernel"] = (em, dict(name="empty_kernel", grid=256, block=256, lds=0))
        seq = seq + ["empty_kernel"] * extra_empty
    out = HEADER
    for n in seq:
        m = ks[n][1]
        out += f"; @launch kernel={n} grid=({m['grid']},1,1) block=({m['block']},1,1) lds={m['lds']}\n"
    out += '.amdgcn_target "amdgcn-amd-amdhsa--gfx950"\n'
    for n, (txt, m) in ks.items():
        out += txt
    return out, seq, ks

if __name__ == "__main__":
    extra = int(sys.argv[2]) if len(sys.argv) > 2 else 0
    out, seq, ks = build(extra)
    path = sys.argv[1] if len(sys.argv) > 1 else "cdna_kernels/" + NAME + ".s"
    open(path, "w").write(out)
    print("wrote", path, len(out), "bytes")
```

```python
from common import *

PREFETCH_W = bool(int(os.environ.get('PREFETCH_W', '1')))
BOUND_MAX = 60.0
XOFF = 131072

def attn_kernels(name0, name1):
    name = "attn"
    S_OBUF = 50
    g = Gen()
    g(kernel_header(name1))
    g(f"s_mov_b32 s{S_OBUF}, {WS_OB}")
    g(f"s_branch L_{name}_body")
    g(kernel_header(name0))
    g(f"s_mov_b32 s{S_OBUF}, {WS_OA}")
    g(f"L_{name}_body:")
    txt, meta0 = attn_body(g, name, S_OBUF)
    d0 = kernel_desc(name0, 112, 64); d1 = kernel_desc(name1, 112, 64)
    m0 = dict(meta0, name=name0); m1 = dict(meta0, name=name1)
    return (txt + d0 + d1, m0), ("", m1)

def attn_body(g, name, S_OBUF):
    g.stamp_vgpr = 120
    S_WS = 12
    S_HEAD, S_QB, S_WAVE, S_T, S_KH = 20, 21, 22, 23, 24
    S_TMP = 30
    S_MASK = 40
    S_DS, S_DL = 42, 43
    vQ = 4
    vK = 8
    vV = 16
    vP = 24
    vSa = 32
    vSb = 48
    vO = 64
    vM = 80
    vKa, vVa = 96, 97
    t0 = 98
    vMx = 106
    g.stamp("start")
    g(f"""
    s_cmp_ge_u32 s2, 256
    s_cbranch_scc1 L_{name}_end
    s_load_dwordx2 s[6:7], s[0:1], {KA_WS}
    v_lshrrev_b32 v1, 6, v0
    v_and_b32 v0, 63, v0
    s_and_b32 s{S_TMP}, s2, 7
    s_lshr_b32 s{S_TMP+1}, s2, 3
    v_readfirstlane_b32 s{S_WAVE}, v1
    s_and_b32 s{S_QB}, s{S_TMP+1}, 7
    s_lshr_b32 s{S_TMP+1}, s{S_TMP+1}, 3
    s_lshl_b32 s{S_HEAD}, s{S_TMP}, 2
    s_add_u32 s{S_HEAD}, s{S_HEAD}, s{S_TMP+1}
    s_and_b32 s{S_T}, s{S_WAVE}, 7
    s_lshr_b32 s{S_KH}, s{S_WAVE}, 3
    s_lshl_b32 s{S_TMP}, s{S_QB}, 3
    s_add_u32 s{S_T}, s{S_T}, s{S_TMP}
    v_lshlrev_b32 v2, 4, v0                   ; lane*16
    s_and_b32 s{S_TMP}, s{S_WAVE}, 3
    s_lshl_b32 s{S_TMP+1}, s{S_KH}, 5
    s_add_u32 s{S_TMP}, s{S_TMP}, s{S_TMP+1}
    s_lshl_b32 s{S_TMP}, s{S_TMP}, 10          ; tile*1024
    s_bfe_u32 s{S_TMP+1}, s{S_WAVE}, 0x10002   ; kind
    s_lshl_b32 s{S_TMP+2}, s{S_TMP+1}, 16
    s_add_u32 s{S_DL}, s{S_TMP}, s{S_TMP+2}
    s_mul_i32 s{S_TMP+2}, s{S_TMP+1}, {WS_V - WS_K}
    s_add_u32 s{S_TMP}, s{S_TMP}, s{S_TMP+2}
    s_lshl_b32 s{S_TMP+2}, s{S_HEAD}, 16
    s_add_u32 s{S_TMP}, s{S_TMP}, s{S_TMP+2}
    s_add_u32 s{S_DS}, s{S_TMP}, {WS_K}
    s_waitcnt lgkmcnt(0)
    """)
    srd(g, S_WS, 6, 7, WS_USED)
    def dma(c):
        g(f"s_add_u32 m0, s{S_DL}, {c*4096}")
        g(f"s_add_u32 s{S_TMP+4}, s{S_DS}, {c*4096}")
        g.vmem(f"buffer_load_dwordx4 v2, s[{S_WS}:{S_WS+3}], s{S_TMP+4} offen lds", f"d{c}")
    dma(0)
    g(f"""
    s_lshl_b32 s{S_TMP+3}, s{S_HEAD}, 16
    s_lshl_b32 s{S_TMP+4}, s{S_T}, 10
    s_add_u32 s{S_TMP+3}, s{S_TMP+3}, s{S_TMP+4}
    s_add_u32 s{S_TMP+3}, s{S_TMP+3}, {WS_Q}
    """)
    g.vmem(f"buffer_load_dwordx4 v[{vQ}:{vQ+3}], v2, s[{S_WS}:{S_WS+3}], s{S_TMP+3} offen", "q")
    g(f"""
    s_lshl_b32 s{S_TMP+3}, s{S_HEAD}, 8
    s_add_u32 s{S_TMP+3}, s{S_TMP+3}, {WS_KN}
    v_lshlrev_b32 v{t0+1}, 2, v0
    """)
    g.vmem(f"buffer_load_dword v{t0+2}, v{t0+1}, s[{S_WS}:{S_WS+3}], s{S_TMP+3} offen", "q")
    dma(1)
    g(f"""
    s_lshl_b32 s{S_TMP}, s{S_KH}, 15
    v_add_u32 v{vKa}, s{S_TMP}, v2
    v_lshrrev_b32 v{t0+3}, 5, v0
    v_lshlrev_b32 v{t0+3}, 8, v{t0+3}          ; h*256
    v_and_b32 v{t0+4}, 15, v0
    v_lshl_add_u32 v{t0+3}, v{t0+4}, 4, v{t0+3}
    s_add_u32 s{S_TMP}, s{S_TMP}, 65536
    v_add_u32 v{vVa}, s{S_TMP}, v{t0+3}
    s_mov_b32 s{S_MASK}, 0x0000ffff
    s_mov_b32 s{S_MASK+1}, 0x0000ffff
    """)
    for i in range(8):
        g(f"v_mov_b32 v{vV+i}, 0x3f803f80")
    for i in range(16):
        g(f"v_mov_b32 v{vO+i}, 0")
    g.wait_vm("q")
    kn = t0 + 2
    for ror in (8, 4, 2, 1):
        g("s_nop 1")
        g(f"v_max_f32_dpp v{kn}, v{kn}, v{kn} row_ror:{ror} row_mask:0xf bank_mask:0xf")
    g(f"v_mov_b32 v{kn+1}, v{kn}")
    g("s_nop 1")
    g(f"v_permlane16_swap_b32 v{kn}, v{kn+1}")
    g("s_nop 1")
    g(f"v_max_f32 v{kn}, v{kn}, v{kn+1}")
    g(f"v_mov_b32 v{kn+1}, v{kn}")
    g("s_nop 1")
    g(f"v_permlane32_swap_b32 v{kn}, v{kn+1}")
    g("s_nop 1")
    g(f"v_max_f32 v{kn}, v{kn}, v{kn+1}")
    qn = t0 + 4
    g(f"v_lshlrev_b32 v{t0}, 16, v{vQ}")
    g(f"v_and_b32 v{t0+1}, 0xffff0000, v{vQ}")
    g(f"v_mul_f32 v{qn}, v{t0}, v{t0}")
    g(f"v_fmac_f32 v{qn}, v{t0+1}, v{t0+1}")
    for i in range(1, 4):
        g(f"v_lshlrev_b32 v{t0}, 16, v{vQ+i}")
        g(f"v_and_b32 v{t0+1}, 0xffff0000, v{vQ+i}")
        g(f"v_fmac_f32 v{qn}, v{t0}, v{t0}")
        g(f"v_fmac_f32 v{qn}, v{t0+1}, v{t0+1}")
    g(f"v_mov_b32 v{qn+1}, v{qn}")
    g("s_nop 1")
    g(f"v_permlane32_swap_b32 v{qn}, v{qn+1}")
    g("s_nop 1")
    g(f"v_add_f32 v{qn}, v{qn}, v{qn+1}")
    g(f"v_mul_f32 v{qn}, v{qn}, v{kn}")
    g(f"v_sqrt_f32 v{qn}, v{qn}")
    g("s_nop 0")
    g(f"v_mul_f32 v{vMx}, {fl(1.02)}, v{qn}")
    g(f"v_cmp_nge_f32 vcc, {fl(BOUND_MAX)}, v{vMx}")
    g(f"v_sub_f32 v{t0}, 0, v{vMx}")
    for i in range(16):
        g(f"v_mov_b32 v{vM+i}, v{t0}")
    g.stamp("pre_d0")
    g.wait_vm(["d0", "d1"])
    g("s_barrier")
    g.stamp("d0_landed")
    g(f"s_cbranch_vccnz L_{name}_slow")

    def touch():
        nt = (WS_TOUCH1 - WS_TOUCH0) // 8192
        g(f"""
        s_lshl_b32 s{S_TMP+3}, s2, 4
        s_add_u32 s{S_TMP+3}, s{S_TMP+3}, s{S_WAVE}
        s_cmp_ge_u32 s{S_TMP+3}, {nt}
        s_cselect_b32 s{S_TMP+3}, 0, s{S_TMP+3}
        s_lshl_b32 s{S_TMP+3}, s{S_TMP+3}, 13
        s_add_u32 s{S_TMP+3}, s{S_TMP+3}, {WS_TOUCH0}
        v_lshlrev_b32 v108, 7, v0
        """)
        g.vmem(f"buffer_load_dword v109, v108, s[{S_WS}:{S_WS+3}], s{S_TMP+3} offen", "pf")
    def kread(dst, off):
        g(f"ds_read_b128 v[{dst}:{dst+3}], v{vKa} offset:{off}")
    def vread(off):
        g(f"s_mov_b64 exec, s[{S_MASK}:{S_MASK+1}]")
        g(f"ds_read_b128 v[{vV}:{vV+3}], v{vVa} offset:{off}")
        g(f"ds_read_b128 v[{vV+4}:{vV+7}], v{vVa} offset:{off+512}")
        g("s_mov_b64 exec, -1")
    def qk(dstS, kreg):
        g(f"v_mfma_f32_32x32x16_bf16 v[{dstS}:{dstS+15}], v[{kreg}:{kreg+3}], v[{vQ}:{vQ+3}], v[{vM}:{vM+15}]")
    def tile(cur, nxt, kcur_next, kreg_next2, off_k2, off_v1, do_qk=True, do_k=True, do_v=True, mid=None):
        if do_qk:
            g("s_waitcnt lgkmcnt(2)")
            qk(nxt, kcur_next)
            if do_k:
                kread(kreg_next2, off_k2)
        if mid: mid()
        for i in range(8):
            g(f"v_exp_f32 v{cur+i}, v{cur+i}")
        for i in range(4):
            g(f"v_cvt_pk_bf16_f32 v{vP+i}, v{cur+2*i}, v{cur+2*i+1}")
        g(f"v_exp_f32 v{cur+8}, v{cur+8}")
        g(f"s_waitcnt lgkmcnt({1 if (do_qk and do_k) else 0})")
        g(f"v_mfma_f32_32x32x16_bf16 v[{vO}:{vO+15}], v[{vV}:{vV+3}], v[{vP}:{vP+3}], v[{vO}:{vO+15}]")
        for i in range(9, 16):
            g(f"v_exp_f32 v{cur+i}, v{cur+i}")
        for i in range(4, 8):
            g(f"v_cvt_pk_bf16_f32 v{vP+i}, v{cur+2*i}, v{cur+2*i+1}")
        g("s_nop 1")
        g(f"v_mfma_f32_32x32x16_bf16 v[{vO}:{vO+15}], v[{vV+4}:{vV+7}], v[{vP+4}:{vP+7}], v[{vO}:{vO+15}]")
        if do_v:
            vread(off_v1)
    kread(vK, 0)
    g("s_waitcnt lgkmcnt(0)")
    qk(vSa, vK)
    kread(vK+4, 1024)
    vread(0)
    g("s_nop 7")
    def two_tiles(mid0=None, mid1=None):
        tile(vSa, vSb, vK+4, vK, 2048, 1024, mid=mid0)
        tile(vSb, vSa, vK, vK+4, 3072, 2048, mid=mid1)
        g(f"v_add_u32 v{vKa}, 2048, v{vKa}")
        g(f"v_add_u32 v{vVa}, 2048, v{vVa}")
    two_tiles(lambda: (dma(2), dma(3)), lambda: (dma(4), dma(5)))
    two_tiles(lambda: (dma(6), dma(7), touch()), None)
    g.stamp("l0_done")
    g("s_waitcnt vmcnt(1)")
    g("s_barrier")
    g.stamp("all_landed")
    g(f"s_mov_b32 s{S_TMP}, 13")
    g(f"L_{name}_l1:")
    two_tiles()
    g(f"s_sub_u32 s{S_TMP}, s{S_TMP}, 1")
    g(f"s_cmp_lg_u32 s{S_TMP}, 0")
    g(f"s_cbranch_scc1 L_{name}_l1")
    tile(vSa, vSb, vK+4, vK, 0, 1024, do_k=False)
    tile(vSb, vSa, vK, vK+4, 0, 0, do_qk=False, do_v=False)
    g.stamp("loop_done")
    g(f"s_branch L_{name}_fin")

    g(f"L_{name}_slow:")
    for c in range(2, 8):
        dma(c)
    g("s_waitcnt vmcnt(0)")
    g("s_barrier")
    vm = vMx
    g(f"v_mov_b32 v{vm}, 0xff800000")
    g(f"s_mov_b32 s{S_TMP}, 32")
    g(f"L_{name}_sl:")
    kread(vK, 0)
    vread(0)
    g("s_waitcnt lgkmcnt(0)")
    g(f"v_mfma_f32_32x32x16_bf16 v[{vSa}:{vSa+15}], v[{vK}:{vK+3}], v[{vQ}:{vQ+3}], 0")
    g("s_nop 15")
    g(f"v_max3_f32 v{t0+1}, v{vSa}, v{vSa+1}, v{vSa+2}")
    for i in range(3, 15, 2):
        g(f"v_max3_f32 v{t0+1}, v{t0+1}, v{vSa+i}, v{vSa+i+1}")
    g(f"v_max_f32 v{t0+1}, v{t0+1}, v{vSa+15}")
    g(f"v_mov_b32 v{t0+2}, v{t0+1}")
    g("s_nop 1")
    g(f"v_permlane32_swap_b32 v{t0+1}, v{t0+2}")
    g("s_nop 1")
    g(f"v_max3_f32 v{t0+1}, v{t0+1}, v{t0+2}, v{vm}")
    g(f"v_sub_f32 v{t0+2}, v{vm}, v{t0+1}")
    g(f"v_exp_f32 v{t0+2}, v{t0+2}")
    g(f"v_mov_b32 v{vm}, v{t0+1}")
    for i in range(16):
        g(f"v_mul_f32 v{vO+i}, v{vO+i}, v{t0+2}")
    for i in range(16):
        g(f"v_sub_f32 v{vSa+i}, v{vSa+i}, v{vm}")
    for i in range(16):
        g(f"v_exp_f32 v{vSa+i}, v{vSa+i}")
    g("s_nop 0")
    for i in range(8):
        g(f"v_cvt_pk_bf16_f32 v{vP+i}, v{vSa+2*i}, v{vSa+2*i+1}")
    g("s_nop 1")
    g(f"v_mfma_f32_32x32x16_bf16 v[{vO}:{vO+15}], v[{vV}:{vV+3}], v[{vP}:{vP+3}], v[{vO}:{vO+15}]")
    g(f"v_mfma_f32_32x32x16_bf16 v[{vO}:{vO+15}], v[{vV+4}:{vV+7}], v[{vP+4}:{vP+7}], v[{vO}:{vO+15}]")
    g(f"v_add_u32 v{vKa}, 1024, v{vKa}")
    g(f"v_add_u32 v{vVa}, 1024, v{vVa}")
    g("s_nop 15")
    g(f"s_sub_u32 s{S_TMP}, s{S_TMP}, 1")
    g(f"s_cmp_lg_u32 s{S_TMP}, 0")
    g(f"s_cbranch_scc1 L_{name}_sl")

    g(f"L_{name}_fin:")
    g(f"""
    s_and_b32 s{S_TMP}, s{S_WAVE}, 7
    s_mul_i32 s{S_TMP}, s{S_TMP}, 2560
    s_add_u32 s{S_TMP}, s{S_TMP}, {XOFF}
    v_lshlrev_b32 v{t0}, 2, v0
    v_add_u32 v{t0}, s{S_TMP}, v{t0}
    s_nop 15
    s_cmp_eq_u32 s{S_KH}, 0
    s_cbranch_scc1 L_{name}_lo
    """)
    for i in range(9):
        g(f"ds_write_b32 v{t0}, v{vO+i} offset:{256*i}")
    g(f"ds_write_b32 v{t0}, v{vMx} offset:{256*9}")
    g("s_waitcnt lgkmcnt(0)")
    g("s_barrier")
    g("s_endpgm")
    g(f"L_{name}_lo:")
    g("s_barrier")
    for i in range(10):
        g(f"ds_read_b32 v{vSa+i}, v{t0} offset:{256*i}")
    g(f"""
    s_lshl_b32 s{S_TMP}, s{S_T}, 15
    s_lshl_b32 s{S_TMP+1}, s{S_HEAD}, 10
    s_add_u32 s{S_TMP}, s{S_TMP}, s{S_TMP+1}
    s_add_u32 s{S_TMP}, s{S_TMP}, s{S_OBUF}
    s_waitcnt lgkmcnt(0)
    v_max_f32 v{t0}, v{vMx}, v{vSa+9}
    v_sub_f32 v{t0+1}, v{vMx}, v{t0}
    v_sub_f32 v{t0+2}, v{vSa+9}, v{t0}
    v_exp_f32 v{t0+1}, v{t0+1}
    v_exp_f32 v{t0+2}, v{t0+2}
    s_nop 0
    """)
    for i in range(9):
        g(f"v_mul_f32 v{vO+i}, v{vO+i}, v{t0+1}")
    for i in range(9):
        g(f"v_fmac_f32 v{vO+i}, v{vSa+i}, v{t0+2}")
    g(f"v_rcp_f32 v{t0+1}, v{vO+8}")
    g("s_nop 0")
    for i in range(8):
        g(f"v_mul_f32 v{vO+i}, v{vO+i}, v{t0+1}")
    for i in range(4):
        g(f"v_cvt_pk_bf16_f32 v{vP+i}, v{vO+2*i}, v{vO+2*i+1}")
    g(f"buffer_store_dwordx4 v[{vP}:{vP+3}], v2, s[{S_WS}:{S_WS+3}], s{S_TMP} offen")
    if STAMPS:
        g("s_waitcnt vmcnt(0)")
        g.stamp("stores_done")
    g.stamp_flush(1, S_WAVE)
    g(f"L_{name}_end:")
    g("s_endpgm")
    return g.text(), dict(name=name, grid=256, block=1024, lds=XOFF + 8*2560)
```

```python
from common import *
from gemm import (Cfg, LOG2E, GELU_C0, GELU_C1, EPS, QSCALE, unpack8, gelu16, ln_affine, rsq_eps, mfma_drain)

S_WS, S_OUT = 12, 16
S_TB, S_J, S_WAVE, S_TT, S_NG, S_LW = 20, 21, 22, 23, 24, 25
S_KB, S_DMA, S_T, S_MODE = 26, 27, 28, 29
S_TMP = 30
S_EXEC = 40
S_PART, S_SLAB = 44, 45
S_CNT = 46
S_POLL = 47
S_CB = 48
S_CO = 50

RING = 147456
SCR = RING
SCR_CNT = SCR + 1024
SCR_MODE = SCR + 1028
LDS_BYTES = RING + 2048

K_HS, K_P3, K_P4, K_HL, K_HR, K_P5, K_P6, K_P7 = range(8)
POLL_LIMIT = 1 << 18

def mk(key, KS, NTn, NB, NW, LA, w_off, tiles_j, tile_list, ng_stride, tile_stride, swapped, b_off, shift=False):
    c = Cfg()
    c.key, c.KS, c.NTn, c.NB, c.NW, c.LA = key, KS, NTn, NB, NW, LA
    c.w_off, c.tiles_j, c.tile_list, c.ng_stride, c.tile_stride, c.swapped = w_off, tiles_j, tile_list, ng_stride, tile_stride, swapped
    c.b_off, c.shift = b_off, shift
    c.SB = (2 + NTn) * 1024; c.CB = 4 * c.SB; c.NC = KS // 4; c.nup = min(NB, c.NC)
    assert NB * c.CB <= RING
    return c

def bufs(layer):
    return (WS_X, WS_OA) if layer == 0 else (WS_OA, WS_OB)

def phases(layer):
    XS, OB = bufs(layer)
    ph = [mk("p3", 32, 2, 8, 1, 4, WS_WO, 2, [0, 1], 1, 1, [False], OB),
          mk("p4", 32, 2, 8, 1, 4, WS_W1, 2, [0, 1], 1, 1, [False], XS),
          mk("p5", 32, 2, 8, 1, 4, WS_W2, 2, [0, 1], 1, 1, [False], OB, shift=True),
          mk("p6", 32, 7, 4, 4, 2, WS_W3, 7, list(range(7)), 3, 1, [False]*4, XS),
          mk("p7", 112, 2, 8, 1, 4, WS_W4, 2, [0, 1], 1, 1, [False], WS_G)]
    if layer == 0:
        ph.append(mk("p1", 32, 6, 4, 3, 3, WS_WQ, 2, [0, 1, 16, 17, 32, 33], 1, 2, [False, False, True], WS_OA))
    return ph
DEP = {"p4": K_P3, "p5": K_P4, "p6": K_P5, "p7": K_P6, "p1": K_P7}
SIG = {"p3": K_P3, "p4": K_P4, "p5": K_P5, "p6": K_P6, "p7": K_P7}

def loader(g, name, layer):
    ph = phases(layer)
    vA, vB, t0 = 2, 4, 12
    def setup_A(c):
        g(f"""
        s_mul_i32 s{S_TMP}, s{S_J}, {c.tiles_j * c.KS * 1024}
        s_lshl_b32 s{S_TMP+1}, s{S_LW}, 10
        s_add_u32 s{S_TMP}, s{S_TMP}, s{S_TMP+1}
        s_add_u32 s{S_TMP}, s{S_TMP}, {c.w_off}
        v_lshlrev_b32 v{vA}, 4, v0
        v_add_u32 v{vA}, s{S_TMP}, v{vA}
        s_mul_i32 s{S_DMA}, s{S_LW}, {c.SB}
        """)
    def setup_B(c):
        tstride = c.KS * 1024
        if not c.shift:
            g(f"""
            s_lshl_b32 s{S_TMP}, s{S_TB}, 1
            s_mul_i32 s{S_TMP}, s{S_TMP}, {tstride}
            s_lshl_b32 s{S_TMP+1}, s{S_LW}, 10
            s_add_u32 s{S_TMP}, s{S_TMP}, s{S_TMP+1}
            s_add_u32 s{S_TMP}, s{S_TMP}, {c.b_off}
            v_lshlrev_b32 v{vB}, 4, v0
            v_add_u32 v{vB}, s{S_TMP}, v{vB}
            v_add_u32 v{vB+1}, {tstride}, v{vB}
            """)
        else:
            t1, t2, t3 = t0+1, t0+2, t0+3
            g(f"""
            v_lshrrev_b32 v{t1}, 5, v0
            v_lshlrev_b32 v{t1}, 9, v{t1}             ; h*512
            s_lshl_b32 s{S_TMP}, s{S_LW}, 10
            v_add_u32 v{t1}, s{S_TMP}, v{t1}
            s_lshl_b32 s{S_TMP}, s{S_TB}, 16
            s_add_u32 s{S_TMP}, s{S_TMP}, {c.b_off}
            s_lshl_b32 s{S_TMP+1}, s{S_TB}, 15
            s_add_u32 s{S_TMP+2}, s{S_TMP+1}, {WS_HALO - 32768 + 32}
            s_add_u32 s{S_TMP+3}, s{S_TMP+1}, {WS_HALO + 32768 - 1024}
            s_cmp_eq_u32 s{S_TB}, 0
            s_cselect_b32 s{S_TMP+2}, 0x80000000, s{S_TMP+2}
            s_cmp_eq_u32 s{S_TB}, 31
            s_cselect_b32 s{S_TMP+3}, 0x80000000, s{S_TMP+3}
            v_and_b32 v{t0}, 31, v0
            """)
            for gi, dl in enumerate((-1, 1, -2, 2)):
                for tile in range(2):
                    r = vB + 2*gi + tile
                    g(f"v_add_u32 v{r}, {32*tile + dl}, v{t0}")
                    edge = (tile == 0 and dl < 0) or (tile == 1 and dl > 0)
                    g(f"v_bfe_u32 v{t2}, v{r}, 5, 1")
                    g(f"v_lshlrev_b32 v{t2}, 15, v{t2}")
                    g(f"v_and_b32 v{t3}, 31, v{r}")
                    g(f"v_lshl_add_u32 v{t2}, v{t3}, 4, v{t2}")
                    g(f"v_add_u32 v{t2}, s{S_TMP}, v{t2}")
                    if edge:
                        sb = S_TMP+2 if dl < 0 else S_TMP+3
                        g(f"v_lshlrev_b32 v{t3}, 4, v{r}")
                        g(f"v_add_u32 v{t3}, s{sb}, v{t3}")
                        if dl < 0:
                            g(f"v_cmp_gt_i32 vcc, 0, v{r}")
                        else:
                            g(f"v_cmp_lt_i32 vcc, 63, v{r}")
                        g("s_nop 1")
                        g(f"v_cndmask_b32 v{t2}, v{t2}, v{t3}, vcc")
                    g(f"v_add_u32 v{r}, v{t2}, v{t1}")
    def partB(c, ch):
        slot = ch % c.NB
        for tile in range(2):
            g(f"s_add_u32 m0, s{S_DMA}, {slot*c.CB + tile*1024}")
            g(f"s_mov_b32 s{S_KB}, {ch * 4096}")
            r = vB + tile if not c.shift else vB + 2*(ch >> 1) + tile
            sc = "" if c.key == "p3" else " sc1"
            g.vmem(f"buffer_load_dwordx4 v{r}, s[{S_WS}:{S_WS+3}], s{S_KB} offen{sc} lds", f"{c.key}_{ch}")
    def partA(c, ch):
        slot = ch % c.NB
        for nt in range(c.NTn):
            g(f"s_add_u32 m0, s{S_DMA}, {slot*c.CB + (2+nt)*1024}")
            g(f"s_mov_b32 s{S_KB}, {ch * 4096 + c.tile_list[nt] * c.KS * 1024}")
            g.vmem(f"buffer_load_dwordx4 v{vA}, s[{S_WS}:{S_WS+3}], s{S_KB} offen lds", f"{c.key}_{ch}")
    def free_event(old, lo, hi):
        ev = 0
        for slot in range(min(old.NB, old.NC)):
            a, b = slot*old.CB, (slot+1)*old.CB
            if a < hi and lo < b:
                last = max(cc for cc in range(old.NC) if cc % old.NB == slot)
                ev = max(ev, min(last + 2, old.NC))
        return ev
    c = ph[0]
    setup_A(c); setup_B(c)
    for ch in range(c.nup):
        partB(c, ch); partA(c, ch)
    for p, c in enumerate(ph):
        nxt = ph[p+1] if p + 1 < len(ph) else None
        sched = {}
        if nxt is not None:
            budget = W1_BUDGET[c.key]
            for k in range(nxt.nup):
                ev = free_event(c, k*nxt.CB, (k+1)*nxt.CB)
                if k >= budget: ev = 'S'
                sched.setdefault(ev, []).append(k)
        a_ready = [False]
        def prefetch(ev):
            for k in sched.get(ev, []):
                if not a_ready[0]:
                    setup_A(nxt); a_ready[0] = True
                partA(nxt, k)
        last_refill = max([ch for ch in range(1, c.NC) if ch + c.NB - 1 < c.NC and ch + c.NB - 1 >= c.nup] + [-1])
        for ev in list(sched):
            if ev != 'S' and ev <= last_refill + 1:
                sched.setdefault(last_refill + 2 if last_refill + 2 <= c.NC else c.NC, []).extend(sched.pop(ev))
        for ev in sched:
            if ev != 'S': sched[ev].sort()
        pendB = []
        if p > 0:
            g("s_barrier")
            first = min(c.nup, 4)
            for ch in range(first): partB(c, ch)
            pendB = list(range(first, c.nup))
        g.wait_vm(f"{c.key}_0")
        g("s_barrier")
        for ch in pendB[:2]: partB(c, ch)
        pendB = pendB[2:]
        prefetch(0)
        for ch in range(c.NC - 1):
            g.wait_vm(f"{c.key}_{ch+1}")
            g("s_barrier")
            for b in pendB[:2]: partB(c, b)
            pendB = pendB[2:]
            if ch >= 1 and ch + c.NB - 1 < c.NC and ch + c.NB - 1 >= c.nup:
                partB(c, ch + c.NB - 1); partA(c, ch + c.NB - 1)
            if ch + 1 < c.NC: prefetch(ch + 1) if (ch + 1) != c.NC else None
        if nxt is not None:
            g("s_barrier")
            prefetch(c.NC)
            setup_B(nxt)
            g("s_barrier")
            prefetch('S')
    g("s_endpgm")

W1_BUDGET = {"p3": 8, "p4": 8, "p5": 2, "p6": 8, "p7": 2, "p1": 0}

def compute(g, name, layer):
    ph = phases(layer)
    V = {}
    n = 1
    def al(nm, cnt, align=1):
        nonlocal n
        n = (n + align - 1) // align * align
        V[nm] = n; n += cnt
    al('t0', 6, 2); al('vRA', 3); al('vRB', 3); al('ad', 1); al('mr', 2, 2); al('ab', 2, 2); al('abq', 2, 2); al('gc', 2, 2); al('mv', 4, 2)
    al('x1', 16, 4); al('y', 16, 4)
    al('acc', 64, 4); al('frag', 64, 4); al('st', 16, 4); al('cs', 32, 4); al('pk', 8, 4); al('csv', 2, 2)
    V['_n'] = n
    V['tmp'] = V['frag']
    V['val'] = V['frag'] + 16
    V['res'] = V['frag'] + 32
    V['rowa'] = V['frag'] + 16
    V['rowb'] = V['frag'] + 32
    t0 = V['t0']; acc = V['acc']; pk = V['pk']
    uid = [0]
    def lab(s):
        uid[0] += 1
        return f"L_{name}_{s}{uid[0]}"

    def mode_stores(instrs, tag="st"):
        a, b = lab("sf"), lab("sd")
        g(f"s_cmp_eq_u32 s{S_MODE}, 1")
        g(f"s_cbranch_scc1 {a}")
        for i in instrs: g(i + " sc1")
        g(f"s_branch {b}")
        g(f"{a}:")
        for i in instrs: g(i)
        g(f"{b}:")
        for i in instrs: g.vm.append(tag)

    def cnt_addr(sreg, kind, tb_delta=0):
        g(f"s_add_u32 s{sreg}, s{S_TB}, {kind*32 + tb_delta}")
        g(f"s_lshl_b32 s{sreg}, s{sreg}, 8")
        g(f"s_add_u32 s{sreg}, s{sreg}, s{S_CNT}")

    def sync_next(kind, halo_out=False, halo_in=False):
        skip, slow, done = lab("yk"), lab("ys"), lab("yd")
        g.wait_all_vm()
        g("s_barrier")
        g.stamp(f"S{kind}")
        g(f"s_cmp_lg_u32 s{S_WAVE}, 0")
        g(f"s_cbranch_scc1 {skip}")
        g(f"s_mov_b64 s[{S_EXEC}:{S_EXEC+1}], exec")
        if halo_out:
            g(f"""
            s_bfe_u32 s{S_TMP+2}, s{S_J}, 0x10001
            s_add_u32 s{S_TMP+2}, s{S_TMP+2}, {K_HL}
            s_lshl_b32 s{S_TMP+2}, s{S_TMP+2}, 13
            s_add_u32 s{S_TMP+2}, s{S_TMP+2}, s{S_CO}
            s_mov_b64 exec, 1
            v_mov_b32 v{t0+3}, s{S_TMP+2}
            v_mov_b32 v{t0+1}, 1
            buffer_atomic_add v{t0+1}, v{t0+3}, s[{S_WS}:{S_WS+3}], 0 offen sc1
            """)
        g(f"s_cmp_eq_u32 s{S_MODE}, 1")
        g(f"s_cbranch_scc0 {slow}")
        lp, le = lab("yl"), lab("ye")
        g(f"""
        s_mov_b32 s{S_TMP}, 1
        s_atomic_add s{S_TMP}, s[{S_CB}:{S_CB+1}], {hex(kind*8192)}
        s_mov_b32 s{S_POLL}, 0
        {lp}:
        s_mov_b32 s{S_TMP+1}, 0
        s_atomic_add s{S_TMP+1}, s[{S_CB}:{S_CB+1}], {hex(kind*8192)} glc
        s_add_u32 s{S_POLL}, s{S_POLL}, 1
        s_cmp_gt_u32 s{S_POLL}, {POLL_LIMIT}
        s_cbranch_scc1 {le}
        s_waitcnt lgkmcnt(0)
        s_cmp_ge_u32 s{S_TMP+1}, 8
        s_cbranch_scc0 {lp}
        {le}:
        s_waitcnt lgkmcnt(0)
        s_branch {done}
        {slow}:
        s_add_u32 s{S_TMP}, s{S_CO}, {kind*8192}
        s_mov_b64 exec, 1
        v_mov_b32 v{t0}, s{S_TMP}
        v_mov_b32 v{t0+1}, 1
        buffer_atomic_add v{t0+1}, v{t0}, s[{S_WS}:{S_WS+3}], 0 offen sc1
        v_mov_b32 v{t0+1}, 8
        """)
        vpoll(1)
        g(f"{done}:")
        if halo_in:
            g(f"""
            s_add_u32 s{S_TMP+1}, s{S_CO}, {K_HL*8192 - 256}
            s_add_u32 s{S_TMP+2}, s{S_CO}, {K_HR*8192 + 256}
            s_cmp_eq_u32 s{S_TB}, 0
            s_cselect_b32 s{S_TMP+1}, s{S_CO}, s{S_TMP+1}
            s_cselect_b32 s{S_TMP+3}, 0, 4
            s_cmp_eq_u32 s{S_TB}, 31
            s_cselect_b32 s{S_TMP+2}, s{S_CO}, s{S_TMP+2}
            s_cselect_b32 s{S_TMP+4}, 0, 4
            s_mov_b64 exec, 3
            v_mov_b32 v{t0}, s{S_TMP+1}
            v_mov_b32 v{t0+1}, s{S_TMP+3}
            v_writelane_b32 v{t0}, s{S_TMP+2}, 1
            v_writelane_b32 v{t0+1}, s{S_TMP+4}, 1
            """)
            vpoll(3)
        g(f"s_mov_b64 exec, s[{S_EXEC}:{S_EXEC+1}]")
        g(f"{skip}:")
        g("s_barrier")
        g.stamp(f"Z{kind}")
        g.vm = []; g.lg = []

    def vpoll(mask):
        loop, dn = lab("pl"), lab("pd")
        g(f"""
        s_mov_b32 s{S_POLL}, 0
        {loop}:
        buffer_load_dword v{t0+2}, v{t0}, s[{S_WS}:{S_WS+3}], 0 offen sc1
        s_add_u32 s{S_POLL}, s{S_POLL}, 1
        s_cmp_gt_u32 s{S_POLL}, {POLL_LIMIT}
        s_cbranch_scc1 {dn}
        s_waitcnt vmcnt(0)
        v_cmp_ge_u32 vcc, v{t0+2}, v{t0+1}
        s_nop 1
        s_cmp_eq_u32 vcc_lo, {mask}
        s_cbranch_scc0 {loop}
        {dn}:
        s_waitcnt vmcnt(0)
        """)

    def load_stats(off, tag):
        st = V['st']
        g(f"""
        s_lshl_b32 s{S_TMP}, s{S_T}, 12
        s_add_u32 s{S_TMP}, s{S_TMP}, {off}
        v_lshlrev_b32 v{t0}, 2, v0
        """)
        for p in range(16):
            g.vmem(f"buffer_load_dword v{st+p}, v{t0}, s[{S_WS}:{S_WS+3}], s{S_TMP} offen offset:{256*p} sc1", tag)
    def reduce_stats(vm, vvar):
        st = V['st']
        for k in (8, 4, 2, 1):
            for i in range(k):
                g(f"v_add_f32 v{st+i}, v{st+i}, v{st+i+k}")
        g(f"v_mov_b32 v{st+1}, v{st}")
        g("s_nop 1")
        g(f"v_permlane32_swap_b32 v{st}, v{st+1}")
        g("s_nop 1")
        g(f"v_mul_f32 v{vm}, {fl(1.0/D)}, v{st}")
        g(f"v_mul_f32 v{vvar}, {fl(1.0/D)}, v{st+1}")
        g(f"v_fma_f32 v{vvar}, -v{vm}, v{vm}, v{vvar}")
        g(f"v_max_f32 v{vvar}, 0, v{vvar}")
    def load_cs(dst, sreg, tag, imm_tile=0):
        g(f"v_lshrrev_b32 v{t0+1}, 5, v0")
        g(f"v_lshlrev_b32 v{t0+1}, 4, v{t0+1}")
        for gq in range(4):
            g.vmem(f"buffer_load_dwordx4 v[{dst+4*gq}:{dst+4*gq+3}], v{t0+1}, s[{S_WS}:{S_WS+3}], s{sreg} offen offset:{imm_tile*128 + 32*gq}", tag)
    def f_soff(sreg, ws_off, nslab_t):
        g(f"""
        s_mul_i32 s{sreg}, s{S_T}, {nslab_t*1024}
        s_lshl_b32 s{sreg+1}, s{S_SLAB}, 10
        s_add_u32 s{sreg}, s{sreg}, s{sreg+1}
        s_add_u32 s{sreg}, s{sreg}, {ws_off}
        """)
    def pack(vals):
        for i in range(8):
            g(f"v_cvt_pk_bf16_f32 v{pk+i}, v{vals+2*i}, v{vals+2*i+1}")
    def store_F(sreg, imm0=0):
        ad = V['ad']
        mode_stores([f"buffer_store_dwordx4 v[{pk}:{pk+3}], v{ad}, s[{S_WS}:{S_WS+3}], s{sreg} offen offset:{imm0}",
                     f"buffer_store_dwordx4 v[{pk+4}:{pk+7}], v{ad}, s[{S_WS}:{S_WS+3}], s{sreg} offen offset:{imm0+1024}"])
    def stats_partial(vals, ws_off):
        a, b = t0, t0 + 2
        g(f"v_pk_add_f32 v[{a}:{a+1}], v[{vals}:{vals+1}], v[{vals+2}:{vals+3}]")
        g(f"v_pk_mul_f32 v[{b}:{b+1}], v[{vals}:{vals+1}], v[{vals}:{vals+1}]")
        g(f"v_pk_fma_f32 v[{b}:{b+1}], v[{vals+2}:{vals+3}], v[{vals+2}:{vals+3}], v[{b}:{b+1}]")
        for i in range(4, 16, 2):
            g(f"v_pk_add_f32 v[{a}:{a+1}], v[{a}:{a+1}], v[{vals+i}:{vals+i+1}]")
            g(f"v_pk_fma_f32 v[{b}:{b+1}], v[{vals+i}:{vals+i+1}], v[{vals+i}:{vals+i+1}], v[{b}:{b+1}]")
        g(f"v_add_f32 v{a}, v{a}, v{a+1}")
        g(f"v_add_f32 v{a+1}, v{b}, v{b+1}")
        g("s_nop 1")
        g(f"v_permlane32_swap_b32 v{a}, v{a+1}")
        g("s_nop 1")
        g(f"v_add_f32 v{a}, v{a}, v{a+1}")
        g(f"""
        s_lshl_b32 s{S_TMP+4}, s{S_T}, 12
        s_lshl_b32 s{S_TMP+5}, s{S_PART}, 8
        s_add_u32 s{S_TMP+4}, s{S_TMP+4}, s{S_TMP+5}
        s_add_u32 s{S_TMP+4}, s{S_TMP+4}, {ws_off}
        v_lshlrev_b32 v{b}, 2, v0
        """)
        mode_stores([f"buffer_store_dword v{a}, v{b}, s[{S_WS}:{S_WS+3}], s{S_TMP+4} offen"])
    def part512():
        g(f"s_lshl_b32 s{S_PART}, s{S_J}, 1")
        g(f"s_add_u32 s{S_PART}, s{S_PART}, s{S_NG}")
        g(f"s_lshl_b32 s{S_SLAB}, s{S_PART}, 1")

    def kloop(c, last, after_y0=None):
        KS, NB, CB, SB, NW, LA = c.KS, c.NB, c.CB, c.SB, c.NW, c.LA
        nset = LA + 1; FS = 4*NW + 4
        assert nset * FS <= 64
        fr = V['frag']; vRA, vRB = V['vRA'], V['vRB']
        nbase = (NB * CB + 65535) // 65536
        g(f"""
        s_mul_i32 s{S_TMP}, s{S_NG}, {c.ng_stride * 1024}
        s_add_u32 s{S_TMP}, s{S_TMP}, 2048
        v_lshlrev_b32 v{vRB}, 4, v0
        v_add_u32 v{vRA}, s{S_TMP}, v{vRB}
        s_lshl_b32 s{S_TMP}, s{S_TT}, 10
        v_add_u32 v{vRB}, s{S_TMP}, v{vRB}
        """)
        for k in range(1, nbase):
            g(f"v_add_u32 v{vRA+k}, {65536*k}, v{vRA}")
            g(f"v_add_u32 v{vRB+k}, {65536*k}, v{vRB}")
        def reads(q):
            st = fr + (q % nset) * FS
            ch, i = divmod(q, 4)
            base = (ch % NB) * CB + i * SB
            kb, imm = divmod(base, 65536)
            g.lds(f"ds_read_b128 v[{st}:{st+3}], v{vRB+kb} offset:{imm}", f"r{q}")
            for w in range(NW):
                ka, imm = divmod(base + w * c.tile_stride * 1024, 65536)
                d = st + 4 + 4*w
                g.lds(f"ds_read_b128 v[{d}:{d+3}], v{vRA+ka} offset:{imm}", f"r{q}")
        def mfmas(q):
            st = fr + (q % nset) * FS
            for w in range(NW):
                a = acc + 16*w
                cin = "0" if q == 0 else f"v[{a}:{a+15}]"
                A = f"v[{st+4+4*w}:{st+7+4*w}]"; B = f"v[{st}:{st+3}]"
                if c.swapped[w]: A, B = B, A
                g(f"v_mfma_f32_32x32x16_bf16 v[{a}:{a+15}], {A}, {B}, {cin}")
        g.lg = []
        g("s_barrier")
        g.stamp(c.key + "_y0")
        if after_y0: after_y0()
        for q in range(min(LA, KS)): reads(q)
        for ch in range(c.NC):
            if ch + 1 < c.NC: g("s_barrier")
            for i in range(4):
                q = 4*ch + i
                if q + LA < KS: reads(q + LA)
                g.wait_lg(f"r{q}")
                mfmas(q)
        g.stamp(c.key + "_loop")

    c = ph[0]
    part512()
    g(f"v_lshlrev_b32 v{V['ad']}, 4, v0")
    XS, OB = bufs(layer)
    f_soff(S_TMP+2, XS, 32)
    res = V['st']
    g.vmem(f"buffer_load_dwordx4 v[{res}:{res+3}], v{V['ad']}, s[{S_WS}:{S_WS+3}], s{S_TMP+2} offen", "res")
    g.vmem(f"buffer_load_dwordx4 v[{res+4}:{res+7}], v{V['ad']}, s[{S_WS}:{S_WS+3}], s{S_TMP+2} offen offset:1024", "res")
    hs = lab("hs")
    g(f"""
    s_cmp_lg_u32 s{S_WAVE}, 0
    s_cbranch_scc1 {hs}
    s_getreg_b32 s{S_TMP+4}, hwreg(HW_REG_XCC_ID, 0, 3)
    s_lshl_b32 s{S_TMP+4}, s{S_TMP+4}, 2
    s_lshl_b32 s{S_TMP+4}, 1, s{S_TMP+4}
    """)
    g(f"""
    s_mov_b64 s[{S_EXEC}:{S_EXEC+1}], exec
    s_mov_b64 exec, 1
    v_mov_b32 v{t0}, s{S_CO}
    v_mov_b32 v{t0+1}, s{S_TMP+4}
    buffer_atomic_add v{t0+1}, v{t0}, s[{S_WS}:{S_WS+3}], 0 offen sc1
    s_mov_b64 exec, s[{S_EXEC}:{S_EXEC+1}]
    {hs}:
    """)
    def early_census():
        g(f"v_mov_b32 v{V['csv']+1}, s{S_CO}")
        g.vmem(f"buffer_load_dword v{V['csv']}, v{V['csv']+1}, s[{S_WS}:{S_WS+3}], 0 offen sc1", "census")
    kloop(c, False, after_y0=early_census)
    lp, dn, chk = lab("hl"), lab("hd"), lab("hc")
    g("s_barrier                                    ; X")
    g.wait_vm("census")
    cv = V['csv']
    g(f"""
    s_getreg_b32 s{S_TMP+4}, hwreg(HW_REG_XCC_ID, 0, 3)
    s_lshl_b32 s{S_TMP+4}, s{S_TMP+4}, 2
    s_lshl_b32 s{S_TMP+4}, 8, s{S_TMP+4}
    s_mov_b32 s{S_POLL}, 0
    s_branch {chk}
    {lp}:
    buffer_load_dword v{cv}, v{cv+1}, s[{S_WS}:{S_WS+3}], 0 offen sc1
    s_waitcnt vmcnt(0)
    {chk}:
    v_readfirstlane_b32 s{S_TMP+6}, v{cv}
    s_add_u32 s{S_POLL}, s{S_POLL}, 1
    s_cmp_gt_u32 s{S_POLL}, {POLL_LIMIT}
    s_cbranch_scc1 {dn}
    s_and_b32 s{S_TMP+7}, s{S_TMP+6}, 0x0f0f0f0f
    s_lshr_b32 s{S_TMP+8}, s{S_TMP+6}, 4
    s_and_b32 s{S_TMP+8}, s{S_TMP+8}, 0x0f0f0f0f
    s_add_u32 s{S_TMP+7}, s{S_TMP+7}, s{S_TMP+8}
    s_mul_i32 s{S_TMP+7}, s{S_TMP+7}, 0x01010101
    s_lshr_b32 s{S_TMP+7}, s{S_TMP+7}, 24
    s_cmp_lt_u32 s{S_TMP+7}, 8
    s_cbranch_scc1 {lp}
    {dn}:
    s_cmp_eq_u32 s{S_TMP+6}, s{S_TMP+4}
    s_cselect_b32 s{S_MODE}, 1, 0
    """)
    g.wait_vm("res")
    x1 = V['x1']
    unpack8(g, x1, res)
    if FORCE_SLOW:
        g(f"s_mov_b32 s{S_MODE}, 0")
    if STAMPS:
        g.stamps.append("MODE"); g(f"v_writelane_b32 v250, s{S_MODE}, {len(g.stamps)-1}")
    f_soff(S_TMP+2, XS, 32)
    g("s_nop 7")
    for i in range(0, 16, 2):
        g(f"v_pk_add_f32 v[{x1+i}:{x1+i+1}], v[{x1+i}:{x1+i+1}], v[{acc+i}:{acc+i+1}]")
    pack(x1)
    store_F(S_TMP+2)
    stats_partial(x1, WS_SX1)
    sync_next(K_P3)

    c = ph[1]
    load_stats(WS_SX1, "st")
    g(f"s_lshl_b32 s{S_TMP+3}, s{S_PART}, 7")
    g(f"s_add_u32 s{S_TMP+3}, s{S_TMP+3}, {WS_CS1}")
    load_cs(V['cs'], S_TMP+3, "cs")
    kloop(c, False)
    g("s_barrier")
    ab, mv, mr = V['ab'], V['mv'], V['mr']
    g.wait_vm(["st", "cs"])
    reduce_stats(mr, mv+1)
    rsq_eps(g, mr+1, mv+1)
    g(f"v_mul_f32 v{mv+3}, v{mr+1}, v{mr+1}")
    g(f"v_mul_f32 v{mv+3}, v{mv+3}, v{mv+1}")
    rsq_eps(g, mv+3, mv+3)
    g(f"v_mul_f32 v{ab}, v{mr+1}, v{mv+3}")
    g(f"v_mul_f32_e64 v{ab+1}, -v{mr}, v{ab}")
    g(f"v_mov_b32 v{V['gc']}, {fl(GELU_C0)}")
    g(f"v_mov_b32 v{V['gc']+1}, {fl(GELU_C1)}")
    f_soff(S_TMP+2, OB, 32)
    ln_affine(g, acc, V['cs'], ab+1, ab)
    gelu16(g, V, acc, V['tmp'])
    pack(acc)
    nh = lab("nh")
    g(f"""
    s_bfe_u32 s{S_TMP+4}, s{S_J}, 0x10001
    s_xor_b32 s{S_TMP+5}, s{S_TMP+4}, 1
    s_cmp_lg_u32 s{S_TMP+5}, s{S_TT}
    s_cbranch_scc1 {nh}
    s_mul_i32 s{S_TMP+5}, s{S_TMP+5}, 30
    v_and_b32 v{t0}, 31, v0
    v_subrev_u32 v{t0}, s{S_TMP+5}, v{t0}
    v_cmp_gt_u32 vcc, 2, v{t0}
    v_lshlrev_b32 v{t0}, 4, v{t0}
    v_lshrrev_b32 v{t0+1}, 5, v0
    v_lshl_add_u32 v{t0}, v{t0+1}, 9, v{t0}       ; h*512 + idx*16
    s_lshl_b32 s{S_TMP+6}, s{S_TB}, 15
    s_lshl_b32 s{S_TMP+7}, s{S_SLAB}, 10
    s_add_u32 s{S_TMP+6}, s{S_TMP+6}, s{S_TMP+7}
    s_add_u32 s{S_TMP+6}, s{S_TMP+6}, {WS_HALO}
    s_and_saveexec_b64 s[{S_EXEC}:{S_EXEC+1}], vcc
    buffer_store_dwordx4 v[{pk}:{pk+3}], v{t0}, s[{S_WS}:{S_WS+3}], s{S_TMP+6} offen sc1
    buffer_store_dwordx4 v[{pk+4}:{pk+7}], v{t0}, s[{S_WS}:{S_WS+3}], s{S_TMP+6} offen offset:1024 sc1
    s_mov_b64 exec, s[{S_EXEC}:{S_EXEC+1}]
    {nh}:
    """)
    store_F(S_TMP+2)
    sync_next(K_P4, halo_out=True, halo_in=True)

    c = ph[2]
    y = V['y']
    g(f"v_mov_b32 v{ab}, v{mr+1}")
    g(f"v_mul_f32_e64 v{ab+1}, -v{mr}, v{mr+1}")
    for i in range(0, 16, 2):
        g(f"v_pk_fma_f32 v[{y+i}:{y+i+1}], v[{x1+i}:{x1+i+1}], v[{ab}:{ab+1}], v[{ab}:{ab+1}] op_sel:[0,0,1] op_sel_hi:[1,0,1]")
    kloop(c, False)
    g("s_barrier")
    f_soff(S_TMP+2, XS, 32)
    g("s_nop 7")
    for i in range(0, 16, 2):
        g(f"v_pk_add_f32 v[{y+i}:{y+i+1}], v[{y+i}:{y+i+1}], v[{acc+i}:{acc+i+1}]")
    pack(y)
    store_F(S_TMP+2)
    stats_partial(y, WS_SY)
    sync_next(K_P5)

    c = ph[3]
    load_stats(WS_SY, "st")
    g(f"s_mul_i32 s{S_PART}, s{S_J}, 7")
    g(f"s_mul_i32 s{S_TMP}, s{S_NG}, 3")
    g(f"s_add_u32 s{S_PART}, s{S_PART}, s{S_TMP}")
    g(f"s_lshl_b32 s{S_SLAB}, s{S_PART}, 1")
    g(f"s_lshl_b32 s{S_TMP+9}, s{S_PART}, 7")
    g(f"s_add_u32 s{S_TMP+9}, s{S_TMP+9}, {WS_CS3}")
    cs = V['cs']
    load_cs(cs, S_TMP+9, "cs0", 0)
    load_cs(cs+16, S_TMP+9, "cs1", 1)
    kloop(c, False)
    g("s_barrier")
    g.wait_vm(["st", "cs0"])
    reduce_stats(mv, mv+1)
    rsq_eps(g, ab, mv+1)
    g(f"v_mul_f32_e64 v{ab+1}, -v{mv}, v{ab}")
    f_soff(S_TMP+2, WS_G, 112)
    for w in range(4):
        g.wait_vm(f"cs{w}")
        ln_affine(g, acc+16*w, cs+16*(w & 1), ab+1, ab)
        if w + 2 < 4:
            load_cs(cs+16*(w & 1), S_TMP+9, f"cs{w+2}", w+2)
        gelu16(g, V, acc+16*w, V['tmp'])
        pack(acc+16*w)
        store_F(S_TMP+2)
        if w < 3:
            g(f"s_add_u32 s{S_TMP+2}, s{S_TMP+2}, 2048")
    sync_next(K_P6)

    c = ph[4]
    part512()
    kloop(c, layer == 1)
    if layer == 0:
        g("s_barrier")
    g("s_nop 15")
    for i in range(0, 16, 2):
        g(f"v_pk_add_f32 v[{y+i}:{y+i+1}], v[{y+i}:{y+i+1}], v[{acc+i}:{acc+i+1}]")
    for i in range(0, 16, 2):
        g(f"v_pk_add_f32 v[{x1+i}:{x1+i+1}], v[{x1+i}:{x1+i+1}], v[{y+i}:{y+i+1}]")
    if layer == 1:
        g(f"""
        s_lshl_b32 s{S_TMP}, s{S_T}, 15
        s_lshl_b32 s{S_TMP+1}, s{S_PART}, 6
        s_add_u32 s{S_TMP}, s{S_TMP}, s{S_TMP+1}
        v_and_b32 v{t0}, 31, v0
        v_lshlrev_b32 v{t0}, 10, v{t0}
        v_lshrrev_b32 v{t0+1}, 5, v0
        v_lshl_add_u32 v{t0}, v{t0+1}, 4, v{t0}
        """)
        pack(x1)
        g("s_nop 1")
        for sl in range(2):
            b = pk + 4*sl
            g(f"v_permlane32_swap_b32 v{b}, v{b+2}")
            g(f"v_permlane32_swap_b32 v{b+1}, v{b+3}")
        g("s_nop 1")
        for sl in range(2):
            b = pk + 4*sl
            g.vmem(f"buffer_store_dwordx4 v[{b}:{b+3}], v{t0}, s[{S_OUT}:{S_OUT+3}], s{S_TMP} offen offset:{32*sl}", "st")
        g.stamp("p7_done")
        return V
    f_soff(S_TMP+2, WS_OA, 32)
    pack(x1)
    store_F(S_TMP+2)
    stats_partial(x1, WS_SXB)
    sync_next(K_P7)

    c = ph[5]
    load_stats(WS_SXB, "st")
    g(f"s_lshl_b32 s{S_TMP+3}, s{S_PART}, 7")
    g(f"s_add_u32 s{S_TMP+3}, s{S_TMP+3}, {WS_CSQ}")
    load_cs(cs, S_TMP+3, "cs")
    g(f"s_add_u32 s{S_TMP+3}, s{S_TMP+3}, 2048")
    load_cs(cs+16, S_TMP+3, "cs")
    g(f"s_add_u32 s{S_TMP+3}, s{S_TMP+3}, 2048")
    g(f"v_and_b32 v{t0}, 31, v0")
    g(f"v_lshlrev_b32 v{t0}, 2, v{t0}")
    g.vmem(f"buffer_load_dword v{V['csv']}, v{t0}, s[{S_WS}:{S_WS+3}], s{S_TMP+3} offen", "cs")
    kloop(c, True)
    qkv_epilogue(g, V, t0)
    g.stamp("p1_done")
    return V

def qkv_epilogue(g, V, t0):
    acc, ab, abq, mv, pk, cs = V['acc'], V['ab'], V['abq'], V['mv'], V['pk'], V['cs']
    st = V['st']
    g.wait_vm(["st", "cs"])
    for k in (8, 4, 2, 1):
        for i in range(k):
            g(f"v_add_f32 v{st+i}, v{st+i}, v{st+i+k}")
    g(f"v_mov_b32 v{st+1}, v{st}")
    g("s_nop 1")
    g(f"v_permlane32_swap_b32 v{st}, v{st+1}")
    g("s_nop 1")
    g(f"v_mul_f32 v{mv}, {fl(1.0/D)}, v{st}")
    g(f"v_mul_f32 v{mv+1}, {fl(1.0/D)}, v{st+1}")
    g(f"v_fma_f32 v{mv+1}, -v{mv}, v{mv}, v{mv+1}")
    g(f"v_max_f32 v{mv+1}, 0, v{mv+1}")
    rsq_eps(g, ab, mv+1)
    g(f"v_mul_f32_e64 v{ab+1}, -v{mv}, v{ab}")
    g(f"v_mul_f32 v{abq}, {fl(QSCALE)}, v{ab}")
    g(f"v_mul_f32 v{abq+1}, {fl(QSCALE)}, v{ab+1}")
    g(f"""
    s_lshl_b32 s{S_TMP}, s{S_WAVE}, 8
    s_add_u32 s{S_TMP}, s{S_TMP}, {SCR}
    v_and_b32 v{t0}, 31, v0
    v_lshlrev_b32 v{t0}, 2, v{t0}
    v_add_u32 v{t0}, s{S_TMP}, v{t0}
    ds_write_b32 v{t0}, v{ab}
    ds_write_b32 v{t0}, v{ab+1} offset:128
    v_lshrrev_b32 v{t0+1}, 5, v0
    v_lshlrev_b32 v{t0+1}, 4, v{t0+1}
    v_add_u32 v{t0+1}, s{S_TMP}, v{t0+1}
    s_waitcnt lgkmcnt(0)
    """)
    for gq in range(4):
        g(f"ds_read_b128 v[{V['rowa']+4*gq}:{V['rowa']+4*gq+3}], v{t0+1} offset:{32*gq}")
        g(f"ds_read_b128 v[{V['rowb']+4*gq}:{V['rowb']+4*gq+3}], v{t0+1} offset:{128+32*gq}")
    g(f"""
    s_lshl_b32 s{S_TMP}, s{S_PART}, 17
    s_lshl_b32 s{S_TMP+1}, s{S_T}, 10
    s_add_u32 s{S_TMP+2}, s{S_TMP}, s{S_TMP+1}
    v_lshlrev_b32 v{V['ad']}, 4, v0
    """)
    def store_heads(vals, ws_off):
        for i in range(8):
            g(f"v_cvt_pk_bf16_f32 v{pk+i}, v{vals+2*i}, v{vals+2*i+1}")
        g(f"s_add_u32 s{S_TMP+4}, s{S_TMP+2}, {ws_off}")
        g(f"s_add_u32 s{S_TMP+5}, s{S_TMP+2}, {ws_off + 65536}")
        g.vmem(f"buffer_store_dwordx4 v[{pk}:{pk+3}], v{V['ad']}, s[{S_WS}:{S_WS+3}], s{S_TMP+4} offen", "st")
        g.vmem(f"buffer_store_dwordx4 v[{pk+4}:{pk+7}], v{V['ad']}, s[{S_WS}:{S_WS+3}], s{S_TMP+5} offen", "st")
        g("s_nop 1")
    ln_affine(g, acc, cs, abq+1, abq)
    store_heads(acc, WS_Q)
    k = acc + 16
    ln_affine(g, k, cs+16, ab+1, ab)
    store_heads(k, WS_K)
    g(f"v_pk_mul_f32 v[{t0}:{t0+1}], v[{k}:{k+1}], v[{k}:{k+1}]")
    g(f"v_pk_mul_f32 v[{t0+2}:{t0+3}], v[{k+8}:{k+9}], v[{k+8}:{k+9}]")
    for i in range(2, 8, 2):
        g(f"v_pk_fma_f32 v[{t0}:{t0+1}], v[{k+i}:{k+i+1}], v[{k+i}:{k+i+1}], v[{t0}:{t0+1}]")
        g(f"v_pk_fma_f32 v[{t0+2}:{t0+3}], v[{k+8+i}:{k+8+i+1}], v[{k+8+i}:{k+8+i+1}], v[{t0+2}:{t0+3}]")
    g(f"v_add_f32 v{t0}, v{t0}, v{t0+1}")
    g(f"v_add_f32 v{t0+1}, v{t0+2}, v{t0+3}")
    g("s_nop 1")
    g(f"v_permlane32_swap_b32 v{t0}, v{t0+1}")
    g("s_nop 1")
    g(f"v_add_f32 v{t0}, v{t0}, v{t0+1}")
    for ror in (8, 4, 2, 1):
        g("s_nop 1")
        g(f"v_max_f32_dpp v{t0}, v{t0}, v{t0} row_ror:{ror} row_mask:0xf bank_mask:0xf")
    g(f"v_mov_b32 v{t0+1}, v{t0}")
    g("s_nop 1")
    g(f"v_permlane16_swap_b32 v{t0}, v{t0+1}")
    g("s_nop 1")
    g(f"v_max_f32 v{t0}, v{t0}, v{t0+1}")
    g(f"""
    s_lshl_b32 s{S_TMP}, s{S_PART}, 9
    s_lshl_b32 s{S_TMP+1}, s{S_T}, 2
    s_add_u32 s{S_TMP}, s{S_TMP}, s{S_TMP+1}
    s_add_u32 s{S_TMP}, s{S_TMP}, {WS_KN}
    v_lshrrev_b32 v{t0+1}, 5, v0
    v_lshlrev_b32 v{t0+1}, 8, v{t0+1}
    s_mov_b64 s[{S_EXEC}:{S_EXEC+1}], exec
    s_mov_b32 exec_lo, 1
    s_mov_b32 exec_hi, 1
    buffer_store_dword v{t0}, v{t0+1}, s[{S_WS}:{S_WS+3}], s{S_TMP} offen
    s_mov_b64 exec, s[{S_EXEC}:{S_EXEC+1}]
    """)
    v = acc + 32
    csv = V['csv']
    g("s_waitcnt lgkmcnt(0)")
    for i in range(0, 16, 2):
        g(f"v_pk_mul_f32 v[{V['rowb']+i}:{V['rowb']+i+1}], v[{V['rowb']+i}:{V['rowb']+i+1}], v[{csv}:{csv+1}] op_sel:[0,0] op_sel_hi:[1,0]")
    for i in range(0, 16, 2):
        g(f"v_pk_fma_f32 v[{v+i}:{v+i+1}], v[{v+i}:{v+i+1}], v[{V['rowa']+i}:{V['rowa']+i+1}], v[{V['rowb']+i}:{V['rowb']+i+1}]")
    for i in range(8):
        g(f"v_cvt_pk_bf16_f32 v{pk+i}, v{v+2*i}, v{v+2*i+1}")
    g(f"""
    v_bfe_u32 v{t0}, v0, 4, 1
    v_lshlrev_b32 v{t0}, 16, v{t0}
    v_lshrrev_b32 v{t0+1}, 5, v0
    v_lshl_add_u32 v{t0}, v{t0+1}, 8, v{t0}
    v_and_b32 v{t0+1}, 15, v0
    v_lshl_add_u32 v{t0}, v{t0+1}, 4, v{t0}
    s_add_u32 s{S_TMP}, s{S_TMP+2}, {WS_V}
    """)
    g.vmem(f"buffer_store_dwordx4 v[{pk}:{pk+3}], v{t0}, s[{S_WS}:{S_WS+3}], s{S_TMP} offen", "st")
    g.vmem(f"buffer_store_dwordx4 v[{pk+4}:{pk+7}], v{t0}, s[{S_WS}:{S_WS+3}], s{S_TMP} offen offset:512", "st")

FORCE_SLOW = bool(int(os.environ.get("FORCE_SLOW", "0")))

def chain_kernel(name, layer):
    g = Gen()
    g(kernel_header(name))
    g.stamp("start")
    g(f"""
    s_cmp_ge_u32 s2, 256
    s_cbranch_scc1 L_{name}_end
    s_load_dwordx2 s[6:7], s[0:1], {KA_WS}
    s_load_dwordx2 s[4:5], s[0:1], {KA_OUT}
    v_lshrrev_b32 v1, 6, v0
    v_and_b32 v0, 63, v0
    s_and_b32 s{S_TMP}, s2, 7
    s_lshr_b32 s{S_TMP+1}, s2, 3
    v_readfirstlane_b32 s{S_WAVE}, v1
    s_and_b32 s{S_J}, s{S_TMP+1}, 7
    s_lshr_b32 s{S_TMP+1}, s{S_TMP+1}, 3
    s_lshl_b32 s{S_TB}, s{S_TMP}, 2
    s_add_u32 s{S_TB}, s{S_TB}, s{S_TMP+1}
    s_and_b32 s{S_TT}, s{S_WAVE}, 1
    s_bfe_u32 s{S_NG}, s{S_WAVE}, 0x10001
    s_and_b32 s{S_LW}, s{S_WAVE}, 3
    s_lshl_b32 s{S_T}, s{S_TB}, 1
    s_add_u32 s{S_T}, s{S_T}, s{S_TT}
    s_lshl_b32 s{S_CO}, s{S_TB}, 8
    s_add_u32 s{S_CO}, s{S_CO}, {WS_CNT + layer*65536}
    s_mov_b32 s{S_MODE}, 0
    s_waitcnt lgkmcnt(0)
    s_add_u32 s{S_CB}, s6, s{S_CO}
    s_addc_u32 s{S_CB+1}, s7, 0
    """)
    srd(g, S_WS, 6, 7, WS_USED)
    srd(g, S_OUT, 4, 5, S * D * 2)
    g(f"""
    s_cmp_ge_u32 s{S_WAVE}, 4
    s_cbranch_scc1 L_{name}_ld
    """)
    gc = Gen(); gc.stamps = g.stamps
    V = compute(gc, name, layer)
    g.l += gc.l
    if STAMPS:
        g("s_waitcnt vmcnt(0)")
        g.stamp("end")
    g.stamp_flush(8 + layer, S_WAVE)
    g("s_endpgm")
    g(f"L_{name}_ld:")
    gl = Gen()
    loader(gl, name, layer)
    g.l += gl.l
    g(f"L_{name}_end:")
    g("s_endpgm")
    return g.text() + kernel_desc(name, max(V['_n'], 32), 64), dict(name=name, grid=256, block=512, lds=LDS_BYTES)
```

```python
import struct, math

S = 2048; D = 512; H = 32; DH = 16; F = 1792
NT = S // 32

def f2u(x):
    return struct.unpack("<I", struct.pack("<f", x))[0]
def fl(x):
    return hex(f2u(x))

KA_X, KA_WQKV, KA_WO, KA_BX, KA_W1, KA_W2, KA_W3, KA_W4, KA_OUT, KA_DBG, KA_WS = [8*i for i in range(11)]

MB = 1 << 20
WS_X   = 0 * MB
WS_OA  = 2 * MB
WS_OB  = 4 * MB
WS_Q   = 6 * MB
WS_K   = 8 * MB
WS_V   = 10 * MB
WS_G   = 12 * MB
WS_SX  = 19 * MB
WS_SX1 = WS_SX + 256 * 1024
WS_SY  = WS_SX + 512 * 1024
WS_SXB = WS_SX + 768 * 1024
WS_HALO = 20 * MB
WS_TOUCH0, WS_TOUCH1 = WS_G, 21 * MB
WS_KN  = 21 * MB
WS_CSQ = WS_KN + 32 * 1024
WS_CS1 = WS_CSQ + 8192
WS_CS3 = WS_CS1 + 4096
WS_CNT = 22 * MB
WS_WQ = 24 * MB
WS_WO = WS_WQ + 48 * 32768
WS_W1 = WS_WO + 16 * 32768
WS_W2 = WS_W1 + 16 * 32768
WS_W3 = WS_W2 + 16 * 32768
WS_W4 = WS_W3 + 56 * 32768
WS_USED = 32 * MB
WS_O = WS_OA; WS_X1 = 33 * MB; WS_H = 35 * MB; WS_Y = 37 * MB; WS_MR = 39 * MB; WS_XB = WS_OA

import os
STAMPS = bool(int(os.environ.get("STAMPS", "0")))
STAMP_LABELS = {}
STAMP_MINV = {'attn0_kernel': 128, 'attn1_kernel': 128}
WS_STAMP = 48 * MB
if STAMPS:
    WS_USED = 64 * MB

class Gen:
    def __init__(self):
        self.l = []
        self.vm = []
        self.lg = []
        self.stamps = []
    def __call__(self, s=""):
        for x in s.split("\n"):
            x = x.strip()
            if x:
                self.l.append(("" if x.endswith(":") or x.startswith(".") else "    ") + x)
    def text(self):
        return "\n".join(self.l) + "\n"
    def vmem(self, instr, tag=None):
        self(instr); self.vm.append(tag)
    def lds(self, instr, tag=None):
        self(instr); self.lg.append(tag)
    def _need(self, lst, tags):
        if not isinstance(tags, (list, tuple, set)): tags = [tags]
        idx = [i for i, t in enumerate(lst) if t in tags]
        if not idx: return None
        return len(lst) - 1 - max(idx)
    def wait_vm(self, tags, extra=""):
        n = self._need(self.vm, tags)
        if n is None:
            if extra: self(extra)
            return
        if n <= 63:
            self(f"s_waitcnt vmcnt({n})")
        self.vm = self.vm[len(self.vm) - n:] if n > 0 else []
    def wait_lg(self, tags):
        n = self._need(self.lg, tags)
        if n is None: return
        assert n <= 15, f"lgkmcnt {n} too large"
        self(f"s_waitcnt lgkmcnt({n})")
        self.lg = self.lg[len(self.lg) - n:] if n > 0 else []
    def wait_all_vm(self):
        self("s_waitcnt vmcnt(0)"); self.vm = []
    def wait_all_lg(self):
        self("s_waitcnt lgkmcnt(0)"); self.lg = []
    stamp_vgpr = 250
    def stamp(self, label=""):
        if not STAMPS: return
        i = len(self.stamps)
        assert i < 64
        self.stamps.append(label)
        self("s_memtime s[62:63]")
        self("s_waitcnt lgkmcnt(0)")
        self(f"v_writelane_b32 v{self.stamp_vgpr}, s62, {i}")
    def stamp_flush(self, kidx, wave_sreg):
        if not STAMPS: return
        self(f"s_lshl_b32 s62, s2, 4")
        self(f"s_add_u32 s62, s62, s{wave_sreg}")
        self(f"s_lshl_b32 s62, s62, 8")
        self(f"s_add_u32 s62, s62, {WS_STAMP + kidx*MB}")
        self("s_mov_b64 exec, -1")
        self("v_lshlrev_b32 v1, 2, v0")
        self(f"buffer_store_dword v{self.stamp_vgpr}, v1, s[12:15], s62 offen")
        STAMP_LABELS[kidx] = list(self.stamps)
    def nop(self, n):
        while n > 0:
            k = min(n, 16)
            self(f"s_nop {k-1}")
            n -= k

def vr(a, n=1):
    return f"v{a}" if n == 1 else f"v[{a}:{a+n-1}]"
def sr(a, n=1):
    return f"s{a}" if n == 1 else f"s[{a}:{a+n-1}]"

def srd(g, dst, lo, hi, nbytes):
    g(f"s_mov_b32 s{dst}, s{lo}")
    g(f"s_mov_b32 s{dst+1}, s{hi}")
    g(f"s_mov_b32 s{dst+2}, {hex(nbytes)}")
    g(f"s_mov_b32 s{dst+3}, 0x00020000")

def kernel_header(name):
    return f""".text
.globl {name}
.p2align 8
.type {name},@function
{name}:
"""

def kernel_desc(name, vgprs, sgprs=96, accum=None):
    if STAMPS:
        sgprs = 96
        vgprs = max(vgprs, STAMP_MINV.get(name, 256)); accum = None
    acc = accum if accum is not None else ((vgprs + 3) // 4) * 4
    return f""".section .rodata,"a"
.p2align 6
.amdhsa_kernel {name}
  .amdhsa_next_free_vgpr {vgprs}
  .amdhsa_next_free_sgpr {sgprs}
  .amdhsa_accum_offset {acc}
  .amdhsa_group_segment_fixed_size 0
  .amdhsa_kernarg_size 88
  .amdhsa_user_sgpr_count 2
  .amdhsa_user_sgpr_kernarg_segment_ptr 1
  .amdhsa_system_sgpr_workgroup_id_x 1
  .amdhsa_float_denorm_mode_32 3
.end_amdhsa_kernel
.text
"""
```

```python
from common import *

LOG2E = 1.4426950408889634
GELU_C0 = -2.0 * LOG2E * math.sqrt(2.0 / math.pi)
GELU_C1 = GELU_C0 * 0.044715
EPS = 1e-5

S_W   = 8
S_WS  = 12
S_OUT = 16
S_TB, S_J, S_WAVE, S_TT, S_NG = 20, 21, 22, 23, 24
S_KB, S_KA, S_DMA = 25, 26, 27
S_T   = 28
S_TMP = 30
S_EXEC = 40

class Cfg:
    pass
KIDX = {"qkv_kernel": 0, "attn_kernel": 1, "wo_kernel": 2, "w1_kernel": 3, "w2_kernel": 4, "w3_kernel": 5, "w4a_kernel": 6, "w4b_kernel": 7}

def unpack_lo(g, dst, src): g(f"v_lshlrev_b32 v{dst}, 16, v{src}")
def unpack_hi(g, dst, src): g(f"v_and_b32 v{dst}, 0xffff0000, v{src}")

def gemm_prologue(g, name, c):
    g(kernel_header(name))
    g.stamp("start")
    g(f"""
    s_cmp_ge_u32 s2, 256
    s_cbranch_scc1 L_{name}_end
    s_load_dwordx2 s[6:7], s[0:1], {KA_WS}
    """)
    if c.need_out:
        g(f"s_load_dwordx2 s[{S_TMP+2}:{S_TMP+3}], s[0:1], {KA_OUT}")
    g(f"""
    v_lshrrev_b32 v1, 6, v0
    v_and_b32 v0, 63, v0                 ; lane
    s_and_b32 s{S_TMP}, s2, 7            ; xcd
    s_lshr_b32 s{S_TMP+1}, s2, 3         ; idx
    v_readfirstlane_b32 s{S_WAVE}, v1
    s_and_b32 s{S_J}, s{S_TMP+1}, 7
    s_lshr_b32 s{S_TMP+1}, s{S_TMP+1}, 3
    s_lshl_b32 s{S_TB}, s{S_TMP}, 2
    s_add_u32 s{S_TB}, s{S_TB}, s{S_TMP+1}
    s_and_b32 s{S_TT}, s{S_WAVE}, 1
    s_lshr_b32 s{S_NG}, s{S_WAVE}, 1
    s_lshl_b32 s{S_T}, s{S_TB}, 1
    s_add_u32 s{S_T}, s{S_T}, s{S_TT}
    s_waitcnt lgkmcnt(0)
    """)
    srd(g, S_WS, 6, 7, WS_USED)
    if c.need_out:
        srd(g, S_OUT, S_TMP+2, S_TMP+3, S * D * 2)

def gemm_main(g, name, c, V):
    KS, NTn, NB = c.KS, c.NTn, c.NB
    SB = (2 + NTn) * 1024
    CB = 4 * SB
    NC = KS // 4
    tstride = KS * 1024
    vB, vA = V['vB'], V['vA']
    t0, t1, t2 = V['t0'], V['t0']+1, V['t0']+2
    if not c.shift:
        g(f"""
        s_lshl_b32 s{S_TMP}, s{S_TB}, 1
        s_mul_i32 s{S_TMP}, s{S_TMP}, {tstride}
        s_lshl_b32 s{S_TMP+1}, s{S_WAVE}, 10
        s_add_u32 s{S_TMP}, s{S_TMP}, s{S_TMP+1}
        s_add_u32 s{S_TMP}, s{S_TMP}, {c.b_off}
        v_lshlrev_b32 v{vB}, 4, v0
        v_add_u32 v{vB}, s{S_TMP}, v{vB}
        v_add_u32 v{vB+1}, {tstride}, v{vB}
        """)
    else:
        g(f"""
        s_lshl_b32 s{S_TMP}, s{S_TB}, 6
        v_and_b32 v{t0}, 31, v0
        v_add_u32 v{t0}, s{S_TMP}, v{t0}
        v_lshrrev_b32 v{t1}, 5, v0
        v_lshlrev_b32 v{t1}, 9, v{t1}             ; h*512
        s_lshl_b32 s{S_TMP+1}, s{S_WAVE}, 10
        s_add_u32 s{S_TMP+1}, s{S_TMP+1}, {c.b_off}
        v_add_u32 v{t1}, s{S_TMP+1}, v{t1}        ; base + w*1024 + h*512
        s_mov_b32 s{S_TMP+2}, 0x80000000
        """)
        for gi, dl in enumerate((-1, 1, -2, 2)):
            for tile in range(2):
                r = vB + 2*gi + tile
                g(f"""
                v_add_u32 v{r}, {32*tile + dl}, v{t0}
                v_cmp_gt_u32 vcc, {S}, v{r}
                v_lshrrev_b32 v{t2}, 5, v{r}
                v_and_b32 v{r}, 31, v{r}
                v_lshlrev_b32 v{r}, 4, v{r}
                v_lshl_add_u32 v{r}, v{t2}, {int(math.log2(tstride))}, v{r}
                v_add_u32 v{r}, v{r}, v{t1}
                v_mov_b32 v{t2}, s{S_TMP+2}
                v_cndmask_b32 v{r}, v{t2}, v{r}, vcc
                """)
    g(f"""
    s_mul_i32 s{S_TMP}, s{S_J}, {c.tiles_j * KS * 1024}
    s_lshl_b32 s{S_TMP+1}, s{S_WAVE}, 10
    s_add_u32 s{S_TMP}, s{S_TMP}, s{S_TMP+1}
    s_add_u32 s{S_TMP}, s{S_TMP}, {c.w_off}
    v_lshlrev_b32 v{vA}, 4, v0
    v_add_u32 v{vA}, s{S_TMP}, v{vA}
    s_mul_i32 s{S_DMA}, s{S_WAVE}, {SB}
    """)
    def dma(chunk):
        slot = chunk % NB
        for tile in range(2):
            g(f"s_add_u32 m0, s{S_DMA}, {slot*CB + tile*1024}")
            g(f"s_mov_b32 s{S_KB}, {chunk * 4096}")
            r = vB + tile if not c.shift else vB + 2*(chunk >> 1) + tile
            g.vmem(f"buffer_load_dwordx4 v{r}, s[{S_WS}:{S_WS+3}], s{S_KB} offen lds", f"d{chunk}")
        for nt in range(NTn):
            g(f"s_add_u32 m0, s{S_DMA}, {slot*CB + (2+nt)*1024}")
            g(f"s_mov_b32 s{S_KA}, {chunk * 4096 + c.tile_list[nt] * KS * 1024}")
            g.vmem(f"buffer_load_dwordx4 v{vA}, s[{S_WS}:{S_WS+3}], s{S_KA} offen lds", f"d{chunk}")
    nup = min(NB, NC)
    g.stamp("pre_dma")
    for ch in range(nup):
        dma(ch)
    g.stamp("dma_issued")
    nbase = (NB * CB + 65535) // 65536
    vRA, vRB = V['vRA'], V['vRB']
    g(f"""
    s_mul_i32 s{S_TMP}, s{S_NG}, {c.ng_stride * 1024}
    s_add_u32 s{S_TMP}, s{S_TMP}, 2048
    v_lshlrev_b32 v{vRB}, 4, v0
    v_add_u32 v{vRA}, s{S_TMP}, v{vRB}
    s_lshl_b32 s{S_TMP}, s{S_TT}, 10
    v_add_u32 v{vRB}, s{S_TMP}, v{vRB}
    """)
    for k in range(1, nbase):
        g(f"v_add_u32 v{vRA+k}, {65536*k}, v{vRA}")
        g(f"v_add_u32 v{vRB+k}, {65536*k}, v{vRB}")
    c.epi_loads(g, c, V)
    NW = c.NW
    LA = c.LA
    nset = LA + 1
    fr = V['frag']
    FS = 4*NW + 4
    acc = V['acc']
    def reads(q):
        st = fr + (q % nset) * FS
        ch, i = divmod(q, 4)
        base = (ch % NB) * CB + i * SB
        k, o = divmod(base, 65536)
        assert o + 1024 < 65536 + 1024
        ob = base
        kb, imm = divmod(ob, 65536)
        g.lds(f"ds_read_b128 v[{st}:{st+3}], v{vRB+kb} offset:{imm}", f"r{q}")
        for w in range(NW):
            oa = base + w * c.tile_stride * 1024
            ka, imm = divmod(oa, 65536)
            d = st + 4 + 4*w
            g.lds(f"ds_read_b128 v[{d}:{d+3}], v{vRA+ka} offset:{imm}", f"r{q}")
    def mfmas(q):
        st = fr + (q % nset) * FS
        for w in range(NW):
            a = acc + 16*w
            cin = "0" if q == 0 else f"v[{a}:{a+15}]"
            A = f"v[{st+4+4*w}:{st+7+4*w}]"; B = f"v[{st}:{st+3}]"
            if c.swapped[w]:
                A, B = B, A
            g(f"v_mfma_f32_32x32x16_bf16 v[{a}:{a+15}], {A}, {B}, {cin}")
    g.wait_vm("d0")
    g("s_barrier")
    g.stamp("d0_landed")
    for q in range(min(LA, KS)):
        reads(q)
    for ch in range(NC):
        if ch + 1 < NC:
            g.wait_vm(f"d{ch+1}")
            g("s_barrier")
            if ch >= 1 and ch + NB - 1 < NC and ch + NB - 1 >= nup:
                dma(ch + NB - 1)
        for i in range(4):
            q = 4*ch + i
            if q + LA < KS:
                reads(q + LA)
            g.wait_lg(f"r{q}")
            mfmas(q)
    g.stamp("loop_done")

def load_stats(g, c, V, off, tag):
    st = V['st']
    g(f"""
    s_lshl_b32 s{S_TMP}, s{S_T}, 12
    s_add_u32 s{S_TMP}, s{S_TMP}, {off}
    v_lshlrev_b32 v{V['t0']}, 2, v0
    v_add_u32 v{V['t0']}, s{S_TMP}, v{V['t0']}
    """)
    for p in range(16):
        g.vmem(f"buffer_load_dword v{st+p}, v{V['t0']}, s[{S_WS}:{S_WS+3}], 0 offen offset:{256*p}", tag)

def reduce_stats(g, V, vm, vvar):
    st = V['st']
    for k in (8, 4, 2, 1):
        for i in range(k):
            g(f"v_add_f32 v{st+i}, v{st+i}, v{st+i+k}")
    g(f"v_mov_b32 v{st+1}, v{st}")
    g("s_nop 1")
    g(f"v_permlane32_swap_b32 v{st}, v{st+1}")
    g("s_nop 1")
    g(f"v_mul_f32 v{vm}, {fl(1.0/D)}, v{st}")
    g(f"v_mul_f32 v{vvar}, {fl(1.0/D)}, v{st+1}")
    g(f"v_fma_f32 v{vvar}, -v{vm}, v{vm}, v{vvar}")
    g(f"v_max_f32 v{vvar}, 0, v{vvar}")

def rsq_eps(g, dst, src):
    g(f"v_add_f32 v{dst}, {fl(EPS)}, v{src}")
    g(f"v_rsq_f32 v{dst}, v{dst}")
    g("s_nop 0")

def load_frag2(g, V, dst, ws_off, nslab_t, slab_s_expr_sreg, tag):
    g(f"""
    s_mul_i32 s{S_TMP}, s{S_T}, {nslab_t*1024}
    s_lshl_b32 s{S_TMP+1}, s{slab_s_expr_sreg}, 10
    s_add_u32 s{S_TMP}, s{S_TMP}, s{S_TMP+1}
    s_add_u32 s{S_TMP}, s{S_TMP}, {ws_off}
    v_lshlrev_b32 v{V['t0']}, 4, v0
    v_add_u32 v{V['t0']}, s{S_TMP}, v{V['t0']}
    """)
    g.vmem(f"buffer_load_dwordx4 v[{dst}:{dst+3}], v{V['t0']}, s[{S_WS}:{S_WS+3}], 0 offen", tag)
    g.vmem(f"buffer_load_dwordx4 v[{dst+4}:{dst+7}], v{V['t0']}, s[{S_WS}:{S_WS+3}], 0 offen offset:1024", tag)

def load_cs(g, V, dst, cs_off_sreg, tag, imm_tile=0):
    g(f"""
    v_lshrrev_b32 v{V['t0']}, 5, v0
    v_lshlrev_b32 v{V['t0']}, 4, v{V['t0']}
    v_add_u32 v{V['t0']}, s{cs_off_sreg}, v{V['t0']}
    """)
    for gq in range(4):
        g.vmem(f"buffer_load_dwordx4 v[{dst+4*gq}:{dst+4*gq+3}], v{V['t0']}, s[{S_WS}:{S_WS+3}], 0 offen offset:{imm_tile*128 + 32*gq}", tag)

def stats_partial_store(g, V, vals, ws_off, part_sreg):
    a, b = V['t0'], V['t0'] + 2
    g(f"v_pk_add_f32 v[{a}:{a+1}], v[{vals}:{vals+1}], v[{vals+2}:{vals+3}]")
    g(f"v_pk_mul_f32 v[{b}:{b+1}], v[{vals}:{vals+1}], v[{vals}:{vals+1}]")
    g(f"v_pk_fma_f32 v[{b}:{b+1}], v[{vals+2}:{vals+3}], v[{vals+2}:{vals+3}], v[{b}:{b+1}]")
    for i in range(4, 16, 2):
        g(f"v_pk_add_f32 v[{a}:{a+1}], v[{a}:{a+1}], v[{vals+i}:{vals+i+1}]")
        g(f"v_pk_fma_f32 v[{b}:{b+1}], v[{vals+i}:{vals+i+1}], v[{vals+i}:{vals+i+1}], v[{b}:{b+1}]")
    g(f"v_add_f32 v{a}, v{a}, v{a+1}")
    g(f"v_add_f32 v{a+1}, v{b}, v{b+1}")
    g("s_nop 1")
    g(f"v_permlane32_swap_b32 v{a}, v{a+1}")
    g("s_nop 1")
    g(f"v_add_f32 v{a}, v{a}, v{a+1}")
    g(f"""
    s_lshl_b32 s{S_TMP}, s{S_T}, 12
    s_lshl_b32 s{S_TMP+1}, s{part_sreg}, 8
    s_add_u32 s{S_TMP}, s{S_TMP}, s{S_TMP+1}
    s_add_u32 s{S_TMP}, s{S_TMP}, {ws_off}
    v_lshlrev_b32 v{b}, 2, v0
    v_add_u32 v{b}, s{S_TMP}, v{b}
    """)
    g.vmem(f"buffer_store_dword v{a}, v{b}, s[{S_WS}:{S_WS+3}], 0 offen", "st")

def pack_store_F(g, V, vals, addr_reg, pk, imm0=0, srd_s=S_WS):
    for i in range(8):
        g(f"v_cvt_pk_bf16_f32 v{pk+i}, v{vals+2*i}, v{vals+2*i+1}")
    g.vmem(f"buffer_store_dwordx4 v[{pk}:{pk+3}], v{addr_reg}, s[{srd_s}:{srd_s+3}], 0 offen offset:{imm0}", "st")
    g.vmem(f"buffer_store_dwordx4 v[{pk+4}:{pk+7}], v{addr_reg}, s[{srd_s}:{srd_s+3}], 0 offen offset:{imm0+1024}", "st")

def f_addr(g, V, dst, ws_off, nslab_t, slab_sreg):
    g(f"""
    s_mul_i32 s{S_TMP}, s{S_T}, {nslab_t*1024}
    s_lshl_b32 s{S_TMP+1}, s{slab_sreg}, 10
    s_add_u32 s{S_TMP}, s{S_TMP}, s{S_TMP+1}
    s_add_u32 s{S_TMP}, s{S_TMP}, {ws_off}
    v_lshlrev_b32 v{dst}, 4, v0
    v_add_u32 v{dst}, s{S_TMP}, v{dst}
    """)

def gelu16(g, V, u, tmp):
    gc = V['gc']
    for i in range(0, 16, 2):
        g(f"v_pk_mul_f32 v[{tmp+i}:{tmp+i+1}], v[{u+i}:{u+i+1}], v[{u+i}:{u+i+1}]")
    for i in range(0, 16, 2):
        g(f"v_pk_fma_f32 v[{tmp+i}:{tmp+i+1}], v[{tmp+i}:{tmp+i+1}], v[{gc}:{gc+1}], v[{gc}:{gc+1}] op_sel:[0,1,0] op_sel_hi:[1,1,0]")
    for i in range(0, 16, 2):
        g(f"v_pk_mul_f32 v[{tmp+i}:{tmp+i+1}], v[{tmp+i}:{tmp+i+1}], v[{u+i}:{u+i+1}]")
    for i in range(16):
        g(f"v_exp_f32 v{tmp+i}, v{tmp+i}")
    for i in range(0, 16, 2):
        g(f"v_pk_add_f32 v[{tmp+i}:{tmp+i+1}], v[{tmp+i}:{tmp+i+1}], 1.0 op_sel_hi:[1,0]")
    for i in range(16):
        g(f"v_rcp_f32 v{tmp+i}, v{tmp+i}")
    for i in range(0, 16, 2):
        g(f"v_pk_mul_f32 v[{u+i}:{u+i+1}], v[{u+i}:{u+i+1}], v[{tmp+i}:{tmp+i+1}]")

def mfma_drain(g):
    g("s_nop 15")

def ln_affine(g, acc, cs, vneg_m_a, va):
    assert vneg_m_a == va + 1
    for i in range(0, 16, 2):
        g(f"v_pk_mul_f32 v[{cs+i}:{cs+i+1}], v[{cs+i}:{cs+i+1}], v[{va}:{va+1}] op_sel:[0,1] op_sel_hi:[1,1]")
    for i in range(0, 16, 2):
        g(f"v_pk_fma_f32 v[{acc+i}:{acc+i+1}], v[{acc+i}:{acc+i+1}], v[{va}:{va+1}], v[{cs+i}:{cs+i+1}] op_sel:[0,0,0] op_sel_hi:[1,0,1]")

def unpack8(g, dst, src):
    for i in range(8):
        unpack_lo(g, dst+2*i, src+i)
        unpack_hi(g, dst+2*i+1, src+i)

def base_regs(c, extra):
    V = {}
    n = 1
    def al(name, cnt, align=1):
        nonlocal n
        n = (n + align - 1) // align * align
        V[name] = n; n += cnt
    al('t0', 6, 2)
    al('vB', 8 if c.shift else 2)
    al('vA', 1)
    nbase = (c.NB * 4 * (2 + c.NTn) * 1024 + 65535) // 65536
    al('vRA', nbase); al('vRB', nbase)
    al('frag', (c.LA + 1) * (4*c.NW + 4), 4)
    al('acc', 16 * c.NW, 4)
    for name, cnt, align in extra:
        al(name, cnt, align)
    V['_n'] = n
    return V

def finish(g, name, c, V):
    g.stamp("epi_issued")
    if STAMPS:
        g("s_waitcnt vmcnt(0)")
        g.stamp("stores_done")
    g.stamp_flush(KIDX[name], S_WAVE)
    g(f"L_{name}_end:")
    g("s_endpgm")
    lds = c.NB * 4 * (2 + c.NTn) * 1024
    return g.text() + kernel_desc(name, max(V['_n'], 32), 64), dict(name=name, grid=256, block=256, lds=lds)

def cfg512(w_off, b_off, KS=32, shift=False):
    c = Cfg()
    c.w_off = w_off; c.KS = KS; c.NTn = 2; c.NB = 8; c.NW = 1; c.LA = 4
    c.tiles_j = 2; c.tile_list = [0, 1]
    c.ng_stride = 1; c.tile_stride = 1; c.swapped = [False]
    c.b_off = b_off; c.shift = shift; c.need_out = False
    return c

def slab_sreg(g, sreg):
    g(f"s_lshl_b32 s{sreg}, s{S_J}, 1")
    g(f"s_add_u32 s{sreg}, s{sreg}, s{S_NG}")
    g(f"s_lshl_b32 s{sreg+1}, s{sreg}, 1")

S_PART, S_SLAB = 44, 45

def wo_kernel(name):
    c = cfg512(WS_WO, WS_O)
    V = base_regs(c, [('res', 8, 4), ('val', 16, 4), ('pk', 8, 4), ('ad', 1, 1)])
    def epi_loads(g, c, V):
        slab_sreg(g, S_PART)
        load_frag2(g, V, V['res'], WS_X, 32, S_SLAB, "res")
    c.epi_loads = epi_loads
    g = Gen(); gemm_prologue(g, name, c); gemm_main(g, name, c, V)
    val, acc = V['val'], V['acc']
    g.wait_vm("res")
    unpack8(g, val, V['res'])
    f_addr(g, V, V['ad'], WS_X1, 32, S_SLAB)
    mfma_drain(g)
    for i in range(0, 16, 2):
        g(f"v_pk_add_f32 v[{val+i}:{val+i+1}], v[{val+i}:{val+i+1}], v[{acc+i}:{acc+i+1}]")
    pack_store_F(g, V, val, V['ad'], V['pk'])
    stats_partial_store(g, V, val, WS_SX1, S_PART)
    return finish(g, name, c, V)

def w1_kernel(name):
    c = cfg512(WS_W1, WS_X1)
    V = base_regs(c, [('st', 16, 4), ('cs', 16, 4), ('tmp', 16, 4), ('pk', 8, 4), ('ab', 2, 2), ('gc', 2, 2), ('mv', 4, 2), ('ad', 1, 1)])
    def epi_loads(g, c, V):
        slab_sreg(g, S_PART)
        load_stats(g, c, V, WS_SX1, "st")
        g(f"s_lshl_b32 s{S_TMP+3}, s{S_PART}, 7")
        g(f"s_add_u32 s{S_TMP+3}, s{S_TMP+3}, {WS_CS1}")
        load_cs(g, V, V['cs'], S_TMP+3, "cs")
    c.epi_loads = epi_loads
    g = Gen(); gemm_prologue(g, name, c); gemm_main(g, name, c, V)
    acc, ab, mv = V['acc'], V['ab'], V['mv']
    g.wait_vm(["st", "cs"])
    reduce_stats(g, V, mv, mv+1)
    rsq_eps(g, mv+2, mv+1)
    g(f"v_mul_f32 v{mv+3}, v{mv+2}, v{mv+2}")
    g(f"v_mul_f32 v{mv+3}, v{mv+3}, v{mv+1}")
    rsq_eps(g, mv+3, mv+3)
    g(f"v_mul_f32 v{ab}, v{mv+2}, v{mv+3}")
    g(f"v_mul_f32 v{ab+1}, -v{mv}, v{ab}".replace("v_mul_f32", "v_mul_f32_e64"))
    g(f"v_mov_b32 v{V['gc']}, {fl(GELU_C0)}")
    g(f"v_mov_b32 v{V['gc']+1}, {fl(GELU_C1)}")
    g(f"""
    s_or_b32 s{S_TMP}, s{S_J}, s{S_NG}
    s_cmp_lg_u32 s{S_TMP}, 0
    s_cbranch_scc1 L_{name}_noexp
    v_cmp_gt_u32 vcc, 32, v0
    v_lshlrev_b32 v{V['t0']+1}, 2, v0
    s_lshl_b32 s{S_TMP}, s{S_T}, 8
    s_add_u32 s{S_TMP}, s{S_TMP}, {WS_MR}
    v_cndmask_b32 v{V['t0']}, v{mv+2}, v{mv}, vcc
    v_add_u32 v{V['t0']+1}, s{S_TMP}, v{V['t0']+1}
    buffer_store_dword v{V['t0']}, v{V['t0']+1}, s[{S_WS}:{S_WS+3}], 0 offen
    L_{name}_noexp:
    """)
    f_addr(g, V, V['ad'], WS_H, 32, S_SLAB)
    mfma_drain(g)
    ln_affine(g, acc, V['cs'], ab+1, ab)
    gelu16(g, V, acc, V['tmp'])
    pack_store_F(g, V, acc, V['ad'], V['pk'])
    return finish(g, name, c, V)

def w2_kernel(name):
    c = cfg512(WS_W2, WS_H, shift=True)
    V = base_regs(c, [('res', 8, 4), ('val', 16, 4), ('pk', 8, 4), ('mr', 2, 2), ('ab', 2, 2), ('ad', 1, 1)])
    def epi_loads(g, c, V):
        slab_sreg(g, S_PART)
        load_frag2(g, V, V['res'], WS_X1, 32, S_SLAB, "res")
        g(f"""
        s_lshl_b32 s{S_TMP}, s{S_T}, 8
        s_add_u32 s{S_TMP}, s{S_TMP}, {WS_MR}
        v_and_b32 v{V['t0']}, 31, v0
        v_lshlrev_b32 v{V['t0']}, 2, v{V['t0']}
        v_add_u32 v{V['t0']}, s{S_TMP}, v{V['t0']}
        """)
        g.vmem(f"buffer_load_dword v{V['mr']}, v{V['t0']}, s[{S_WS}:{S_WS+3}], 0 offen", "res")
        g.vmem(f"buffer_load_dword v{V['mr']+1}, v{V['t0']}, s[{S_WS}:{S_WS+3}], 0 offen offset:128", "res")
    c.epi_loads = epi_loads
    g = Gen(); gemm_prologue(g, name, c); gemm_main(g, name, c, V)
    val, acc, ab, mr = V['val'], V['acc'], V['ab'], V['mr']
    g.wait_vm("res")
    unpack8(g, val, V['res'])
    g(f"v_mov_b32 v{ab}, v{mr+1}")
    g(f"v_mul_f32_e64 v{ab+1}, -v{mr}, v{mr+1}")
    f_addr(g, V, V['ad'], WS_Y, 32, S_SLAB)
    for i in range(0, 16, 2):
        g(f"v_pk_fma_f32 v[{val+i}:{val+i+1}], v[{val+i}:{val+i+1}], v[{ab}:{ab+1}], v[{ab}:{ab+1}] op_sel:[0,0,1] op_sel_hi:[1,0,1]")
    mfma_drain(g)
    for i in range(0, 16, 2):
        g(f"v_pk_add_f32 v[{val+i}:{val+i+1}], v[{val+i}:{val+i+1}], v[{acc+i}:{acc+i+1}]")
    pack_store_F(g, V, val, V['ad'], V['pk'])
    stats_partial_store(g, V, val, WS_SY, S_PART)
    return finish(g, name, c, V)

def w3_kernel(name):
    c = Cfg()
    c.w_off = WS_W3; c.KS = 32; c.NTn = 7; c.NB = 4; c.NW = 4; c.LA = 1
    c.tiles_j = 7; c.tile_list = list(range(7))
    c.ng_stride = 3; c.tile_stride = 1; c.swapped = [False]*4
    c.b_off = WS_Y; c.shift = False; c.need_out = False
    V = base_regs(c, [('st', 16, 4), ('cs', 64, 4), ('tmp', 16, 4), ('pk', 8, 4), ('ab', 2, 2), ('gc', 2, 2), ('mv', 4, 2), ('ad', 1, 1)])
    def epi_loads(g, c, V):
        g(f"s_mul_i32 s{S_PART}, s{S_J}, 7")
        g(f"s_mul_i32 s{S_TMP}, s{S_NG}, 3")
        g(f"s_add_u32 s{S_PART}, s{S_PART}, s{S_TMP}")
        g(f"s_lshl_b32 s{S_SLAB}, s{S_PART}, 1")
        load_stats(g, c, V, WS_SY, "st")
        g(f"s_lshl_b32 s{S_TMP+3}, s{S_PART}, 7")
        g(f"s_add_u32 s{S_TMP+3}, s{S_TMP+3}, {WS_CS3}")
        for w in range(4):
            load_cs(g, V, V['cs'] + 16*w, S_TMP+3, "cs", imm_tile=w)
    c.epi_loads = epi_loads
    g = Gen(); gemm_prologue(g, name, c); gemm_main(g, name, c, V)
    acc, ab, mv = V['acc'], V['ab'], V['mv']
    g.wait_vm(["st", "cs"])
    reduce_stats(g, V, mv, mv+1)
    rsq_eps(g, ab, mv+1)
    g(f"v_mul_f32_e64 v{ab+1}, -v{mv}, v{ab}")
    g(f"v_mov_b32 v{V['gc']}, {fl(GELU_C0)}")
    g(f"v_mov_b32 v{V['gc']+1}, {fl(GELU_C1)}")
    f_addr(g, V, V['ad'], WS_G, 112, S_SLAB)
    mfma_drain(g)
    for w in range(4):
        ln_affine(g, acc+16*w, V['cs']+16*w, ab+1, ab)
        gelu16(g, V, acc+16*w, V['tmp'])
        pack_store_F(g, V, acc+16*w, V['ad'], V['pk'])
        if w < 3:
            g(f"v_add_u32 v{V['ad']}, 2048, v{V['ad']}")
            g("s_nop 0")
    return finish(g, name, c, V)

def w4_kernel(name, final):
    c = cfg512(WS_W4, WS_G, KS=112)
    c.need_out = final
    V = base_regs(c, [('res', 8, 4), ('res2', 8, 4), ('val', 16, 4), ('val2', 16, 4), ('pk', 8, 4), ('ad', 1, 1)])
    def epi_loads(g, c, V):
        slab_sreg(g, S_PART)
        load_frag2(g, V, V['res'], WS_X1, 32, S_SLAB, "res")
        load_frag2(g, V, V['res2'], WS_Y, 32, S_SLAB, "res")
    c.epi_loads = epi_loads
    g = Gen(); gemm_prologue(g, name, c); gemm_main(g, name, c, V)
    val, val2, acc, pk = V['val'], V['val2'], V['acc'], V['pk']
    g.wait_vm("res")
    unpack8(g, val, V['res'])
    unpack8(g, val2, V['res2'])
    mfma_drain(g)
    for i in range(0, 16, 2):
        g(f"v_pk_add_f32 v[{val2+i}:{val2+i+1}], v[{val2+i}:{val2+i+1}], v[{acc+i}:{acc+i+1}]")
    for i in range(0, 16, 2):
        g(f"v_pk_add_f32 v[{val+i}:{val+i+1}], v[{val+i}:{val+i+1}], v[{val2+i}:{val2+i+1}]")
    if not final:
        f_addr(g, V, V['ad'], WS_X, 32, S_SLAB)
        pack_store_F(g, V, val, V['ad'], V['pk'])
        stats_partial_store(g, V, val, WS_SX, S_PART)
    else:
        t0 = V['t0']
        g(f"""
        s_lshl_b32 s{S_TMP}, s{S_T}, 15
        s_lshl_b32 s{S_TMP+1}, s{S_PART}, 6
        s_add_u32 s{S_TMP}, s{S_TMP}, s{S_TMP+1}
        v_and_b32 v{t0}, 31, v0
        v_lshlrev_b32 v{t0}, 10, v{t0}
        v_lshrrev_b32 v{t0+1}, 5, v0
        v_lshl_add_u32 v{t0}, v{t0+1}, 4, v{t0}
        v_add_u32 v{V['ad']}, s{S_TMP}, v{t0}
        """)
        for i in range(8):
            g(f"v_cvt_pk_bf16_f32 v{pk+i}, v{val+2*i}, v{val+2*i+1}")
        g("s_nop 1")
        for sl in range(2):
            b = pk + 4*sl
            g(f"v_permlane32_swap_b32 v{b}, v{b+2}")
            g(f"v_permlane32_swap_b32 v{b+1}, v{b+3}")
        g("s_nop 1")
        for sl in range(2):
            b = pk + 4*sl
            g.vmem(f"buffer_store_dwordx4 v[{b}:{b+3}], v{V['ad']}, s[{S_OUT}:{S_OUT+3}], 0 offen offset:{32*sl}", "st")
    return finish(g, name, c, V)

QSCALE = 0.25 * LOG2E

def qkv_kernel(name):
    c = Cfg()
    c.w_off = WS_WQ; c.KS = 32; c.NTn = 6; c.NB = 4; c.NW = 3; c.LA = 3
    c.tiles_j = 2; c.tile_list = [0, 1, 16, 17, 32, 33]
    c.ng_stride = 1; c.tile_stride = 2; c.swapped = [False, False, True]
    c.b_off = WS_X; c.shift = False; c.need_out = False
    V = base_regs(c, [('st', 16, 4), ('cs', 32, 4), ('csv', 1, 1), ('pk', 8, 4), ('ab', 2, 2), ('abq', 2, 2), ('mv', 4, 2), ('ad', 1, 1), ('rowa', 16, 4), ('rowb', 16, 4)])
    def epi_loads(g, c, V):
        slab_sreg(g, S_PART)
        load_stats(g, c, V, WS_SX, "st")
        g(f"s_lshl_b32 s{S_TMP+3}, s{S_PART}, 7")
        g(f"s_add_u32 s{S_TMP+3}, s{S_TMP+3}, {WS_CSQ}")
        load_cs(g, V, V['cs'], S_TMP+3, "cs")
        g(f"s_add_u32 s{S_TMP+3}, s{S_TMP+3}, 2048")
        load_cs(g, V, V['cs']+16, S_TMP+3, "cs")
        g(f"s_add_u32 s{S_TMP+3}, s{S_TMP+3}, 2048")
        g(f"v_and_b32 v{V['t0']}, 31, v0")
        g(f"v_lshlrev_b32 v{V['t0']}, 2, v{V['t0']}")
        g(f"v_add_u32 v{V['t0']}, s{S_TMP+3}, v{V['t0']}")
        g.vmem(f"buffer_load_dword v{V['csv']}, v{V['t0']}, s[{S_WS}:{S_WS+3}], 0 offen", "cs")
    c.epi_loads = epi_loads
    g = Gen(); gemm_prologue(g, name, c); gemm_main(g, name, c, V)
    acc, ab, abq, mv, t0, pk = V['acc'], V['ab'], V['abq'], V['mv'], V['t0'], V['pk']
    g.wait_vm(["st", "cs"])
    reduce_stats(g, V, mv, mv+1)
    rsq_eps(g, ab, mv+1)
    g(f"v_mul_f32_e64 v{ab+1}, -v{mv}, v{ab}")
    g(f"v_mul_f32 v{abq}, {fl(QSCALE)}, v{ab}")
    g(f"v_mul_f32 v{abq+1}, {fl(QSCALE)}, v{ab+1}")
    g("s_waitcnt lgkmcnt(0)")
    g("s_barrier")
    g(f"""
    s_lshl_b32 s{S_TMP}, s{S_WAVE}, 8
    v_and_b32 v{t0}, 31, v0
    v_lshlrev_b32 v{t0}, 2, v{t0}
    v_add_u32 v{t0}, s{S_TMP}, v{t0}
    ds_write_b32 v{t0}, v{ab}
    ds_write_b32 v{t0}, v{ab+1} offset:128
    v_lshrrev_b32 v{t0+1}, 5, v0
    v_lshlrev_b32 v{t0+1}, 4, v{t0+1}
    v_add_u32 v{t0+1}, s{S_TMP}, v{t0+1}
    s_waitcnt lgkmcnt(0)
    """)
    for gq in range(4):
        g(f"ds_read_b128 v[{V['rowa']+4*gq}:{V['rowa']+4*gq+3}], v{t0+1} offset:{32*gq}")
        g(f"ds_read_b128 v[{V['rowb']+4*gq}:{V['rowb']+4*gq+3}], v{t0+1} offset:{128+32*gq}")
    g(f"""
    s_lshl_b32 s{S_TMP}, s{S_PART}, 17
    s_lshl_b32 s{S_TMP+1}, s{S_T}, 10
    s_add_u32 s{S_TMP+2}, s{S_TMP}, s{S_TMP+1}
    v_lshlrev_b32 v{V['ad']}, 4, v0
    v_add_u32 v{V['ad']}, s{S_TMP+2}, v{V['ad']}
    """)
    mfma_drain(g)
    def store_heads(vals, ws_off):
        for i in range(8):
            g(f"v_cvt_pk_bf16_f32 v{pk+i}, v{vals+2*i}, v{vals+2*i+1}")
        g(f"s_mov_b32 s{S_TMP+4}, {ws_off}")
        g(f"s_mov_b32 s{S_TMP+5}, {ws_off + 65536}")
        g.vmem(f"buffer_store_dwordx4 v[{pk}:{pk+3}], v{V['ad']}, s[{S_WS}:{S_WS+3}], s{S_TMP+4} offen", "st")
        g.vmem(f"buffer_store_dwordx4 v[{pk+4}:{pk+7}], v{V['ad']}, s[{S_WS}:{S_WS+3}], s{S_TMP+5} offen", "st")
        g("s_nop 1")
    ln_affine(g, acc, V['cs'], abq+1, abq)
    store_heads(acc, WS_Q)
    k = acc + 16
    ln_affine(g, k, V['cs']+16, ab+1, ab)
    store_heads(k, WS_K)
    g(f"v_pk_mul_f32 v[{t0}:{t0+1}], v[{k}:{k+1}], v[{k}:{k+1}]")
    g(f"v_pk_mul_f32 v[{t0+2}:{t0+3}], v[{k+8}:{k+9}], v[{k+8}:{k+9}]")
    for i in range(2, 8, 2):
        g(f"v_pk_fma_f32 v[{t0}:{t0+1}], v[{k+i}:{k+i+1}], v[{k+i}:{k+i+1}], v[{t0}:{t0+1}]")
        g(f"v_pk_fma_f32 v[{t0+2}:{t0+3}], v[{k+8+i}:{k+8+i+1}], v[{k+8+i}:{k+8+i+1}], v[{t0+2}:{t0+3}]")
    g(f"v_add_f32 v{t0}, v{t0}, v{t0+1}")
    g(f"v_add_f32 v{t0+1}, v{t0+2}, v{t0+3}")
    g("s_nop 1")
    g(f"v_permlane32_swap_b32 v{t0}, v{t0+1}")
    g("s_nop 1")
    g(f"v_add_f32 v{t0}, v{t0}, v{t0+1}")
    for ror in (8, 4, 2, 1):
        g("s_nop 1")
        g(f"v_max_f32_dpp v{t0}, v{t0}, v{t0} row_ror:{ror} row_mask:0xf bank_mask:0xf")
    g(f"v_mov_b32 v{t0+1}, v{t0}")
    g("s_nop 1")
    g(f"v_permlane16_swap_b32 v{t0}, v{t0+1}")
    g("s_nop 1")
    g(f"v_max_f32 v{t0}, v{t0}, v{t0+1}")
    g(f"""
    s_lshl_b32 s{S_TMP}, s{S_PART}, 9
    s_lshl_b32 s{S_TMP+1}, s{S_T}, 2
    s_add_u32 s{S_TMP}, s{S_TMP}, s{S_TMP+1}
    s_add_u32 s{S_TMP}, s{S_TMP}, {WS_KN}
    v_lshrrev_b32 v{t0+1}, 5, v0
    v_lshlrev_b32 v{t0+1}, 8, v{t0+1}
    v_add_u32 v{t0+1}, s{S_TMP}, v{t0+1}
    s_mov_b64 s[{S_EXEC}:{S_EXEC+1}], exec
    s_mov_b32 exec_lo, 1
    s_mov_b32 exec_hi, 1
    buffer_store_dword v{t0}, v{t0+1}, s[{S_WS}:{S_WS+3}], 0 offen
    s_mov_b64 exec, s[{S_EXEC}:{S_EXEC+1}]
    """)
    v = acc + 32
    g("s_waitcnt lgkmcnt(0)")
    for i in range(0, 16, 2):
        g(f"v_pk_mul_f32 v[{V['rowb']+i}:{V['rowb']+i+1}], v[{V['rowb']+i}:{V['rowb']+i+1}], v[{V['csv']&~1}:{(V['csv']&~1)+1}] op_sel:[0,{V['csv']&1}] op_sel_hi:[1,{V['csv']&1}]")
    for i in range(0, 16, 2):
        g(f"v_pk_fma_f32 v[{v+i}:{v+i+1}], v[{v+i}:{v+i+1}], v[{V['rowa']+i}:{V['rowa']+i+1}], v[{V['rowb']+i}:{V['rowb']+i+1}]")
    for i in range(8):
        g(f"v_cvt_pk_bf16_f32 v{pk+i}, v{v+2*i}, v{v+2*i+1}")
    g(f"""
    v_bfe_u32 v{t0}, v0, 4, 1
    v_lshlrev_b32 v{t0}, 16, v{t0}
    v_lshrrev_b32 v{t0+1}, 5, v0
    v_lshl_add_u32 v{t0}, v{t0+1}, 8, v{t0}
    v_and_b32 v{t0+1}, 15, v0
    v_lshl_add_u32 v{t0}, v{t0+1}, 4, v{t0}
    s_add_u32 s{S_TMP+2}, s{S_TMP+2}, 0
    s_lshl_b32 s{S_TMP}, s{S_PART}, 17
    s_lshl_b32 s{S_TMP+1}, s{S_T}, 10
    s_add_u32 s{S_TMP}, s{S_TMP}, s{S_TMP+1}
    s_add_u32 s{S_TMP}, s{S_TMP}, {WS_V}
    v_add_u32 v{t0}, s{S_TMP}, v{t0}
    """)
    g.vmem(f"buffer_store_dwordx4 v[{pk}:{pk+3}], v{t0}, s[{S_WS}:{S_WS+3}], 0 offen", "st")
    g.vmem(f"buffer_store_dwordx4 v[{pk+4}:{pk+7}], v{t0}, s[{S_WS}:{S_WS+3}], 0 offen offset:512", "st")
    return finish(g, name, c, V)
```

```python
from common import *

UNITS = []
for p in range(24): UNITS.append((KA_WQKV, 3*D*2, D*3*D*2, p, 0, 32, WS_WQ, WS_CSQ))
for p in range(8):  UNITS.append((KA_WO, D*2, D*D*2, p, 0, 32, WS_WO, None))
for p in range(8):  UNITS.append((KA_W1, D*2, D*D*2, p, 0, 32, WS_W1, WS_CS1))
for p in range(8):  UNITS.append((KA_W2, D*2, D*D*2, p, 0, 32, WS_W2, None))
for p in range(28): UNITS.append((KA_W3, F*2, D*F*2, p, 0, 32, WS_W3, WS_CS3))
for p in range(8):
    for kq in range(4): UNITS.append((KA_W4, D*2, F*D*2, p, 28*kq, 112, WS_W4, None))
NUNITS = 64 + len(UNITS)

def prep_kernel(name):
    g = Gen()
    g(kernel_header(name))
    g(f"""
    s_cmp_ge_u32 s2, {NUNITS}
    s_cbranch_scc1 L_{name}_end
    s_load_dwordx2 s[4:5], s[0:1], {KA_X}
    s_load_dwordx2 s[6:7], s[0:1], {KA_WS}
    s_load_dwordx4 s[24:27], s[0:1], {KA_WQKV}
    s_load_dwordx4 s[28:31], s[0:1], {KA_W1}       ; w1, w2
    s_load_dwordx4 s[32:35], s[0:1], {KA_W3}       ; w3, w4
    v_lshrrev_b32 v1, 6, v0
    v_and_b32 v2, 63, v0                 ; lane
    s_nop 0
    v_readfirstlane_b32 s22, v1          ; wave
    s_waitcnt lgkmcnt(0)
    """)
    srd(g, 12, 6, 7, WS_USED)
    g(f"""
    s_cmp_ge_u32 s2, 64
    s_cbranch_scc1 L_{name}_w
    """)
    g(f"""
    s_cmp_lg_u32 s2, 0
    s_cbranch_scc1 L_{name}_nz
    v_lshlrev_b32 v3, 8, v0
    v_add_u32 v3, {WS_CNT}, v3
    v_mov_b32 v4, 0
    buffer_store_dword v4, v3, s[12:15], 0 offen
    L_{name}_nz:
    """)
    srd(g, 8, 4, 5, S * D * 2)
    g(f"""
    v_and_b32 v3, 31, v2                 ; t
    v_lshrrev_b32 v4, 5, v2              ; h
    s_lshl_b32 s16, s2, 5                ; 32*T
    v_add_u32 v5, s16, v3                ; row
    v_lshlrev_b32 v5, 10, v5             ; row*1024
    v_lshl_add_u32 v5, v4, 4, v5         ; + 16h
    s_lshl_b32 s17, s22, 7               ; 128*w
    v_add_u32 v5, s17, v5
    """)
    for i in range(4):
        g.vmem(f"buffer_load_dwordx4 v[{16+4*i}:{19+4*i}], v5, s[8:11], 0 offen offset:{32*i}", f"x{i}")
    g(f"""
    s_lshl_b32 s16, s2, 15
    s_lshl_b32 s17, s22, 12
    s_add_u32 s16, s16, s17
    s_add_u32 s16, s16, {WS_X}
    v_lshlrev_b32 v6, 4, v2
    v_add_u32 v6, s16, v6
    s_lshl_b32 s16, s2, 12               ; T*4096
    s_lshl_b32 s17, s22, 9               ; (2w)*256
    s_add_u32 s16, s16, s17
    s_add_u32 s16, s16, {WS_SX}
    v_lshlrev_b32 v7, 2, v2
    v_add_u32 v7, s16, v7
    """)
    for pair in range(2):
        g.wait_vm([f"x{2*pair}", f"x{2*pair+1}"])
        first = True
        for i in (2*pair, 2*pair+1):
            b = 16 + 4*i
            for r in range(4):
                g(f"v_lshlrev_b32 v8, 16, v{b+r}")
                g(f"v_and_b32 v9, 0xffff0000, v{b+r}")
                if first:
                    g("v_add_f32 v10, v8, v9")
                    g("v_mul_f32 v11, v8, v8")
                    g("v_fmac_f32 v11, v9, v9")
                    first = False
                else:
                    g("v_add_f32 v10, v10, v8")
                    g("v_fmac_f32 v11, v8, v8")
                    g("v_add_f32 v10, v10, v9")
                    g("v_fmac_f32 v11, v9, v9")
        g("s_nop 1")
        g("v_permlane32_swap_b32 v10, v11")
        g("s_nop 1")
        g("v_add_f32 v10, v10, v11")
        g.vmem(f"buffer_store_dword v10, v7, s[12:15], 0 offen offset:{256*pair}", "st")
        for i in (2*pair, 2*pair+1):
            b = 16 + 4*i
            g(f"v_permlane32_swap_b32 v{b}, v{b+2}")
            g(f"v_permlane32_swap_b32 v{b+1}, v{b+3}")
        for i in (2*pair, 2*pair+1):
            b = 16 + 4*i
            g.vmem(f"buffer_store_dwordx4 v[{b}:{b+3}], v6, s[12:15], 0 offen offset:{1024*i}", "st")
    g("s_endpgm")
    g(f"L_{name}_w:")
    g(f"s_sub_u32 s16, s2, 64")
    ranges = [(0, 24, 24, 3*D*2, D*3*D*2, WS_WQ, WS_CSQ, 32),
              (24, 32, 26, D*2, D*D*2, WS_WO, 0, 32),
              (32, 40, 28, D*2, D*D*2, WS_W1, WS_CS1, 32),
              (40, 48, 30, D*2, D*D*2, WS_W2, 0, 32),
              (48, 76, 32, F*2, D*F*2, WS_W3, WS_CS3, 32),
              (76, 108, 34, D*2, F*D*2, WS_W4, 0, 112)]
    for i, (lo, hi, sp, rowb, matb, dst, cs, ns) in enumerate(ranges):
        if i < len(ranges) - 1:
            g(f"s_cmp_ge_u32 s16, {hi}")
            g(f"s_cbranch_scc1 L_{name}_r{i+1}")
        srd(g, 8, sp, sp+1, matb)
        g(f"s_mov_b32 s17, {rowb}")
        g(f"s_sub_u32 s18, s16, {lo}")
        if ns == 112:
            g("s_and_b32 s19, s18, 3")
            g("s_mul_i32 s19, s19, 28")
            g("s_lshr_b32 s18, s18, 2")
        else:
            g("s_mov_b32 s19, 0")
        g(f"s_mov_b32 s20, {ns}")
        g(f"s_mov_b32 s21, {dst}")
        g(f"s_mov_b32 s23, {cs}")
        if i < len(ranges) - 1:
            g(f"s_branch L_{name}_go")
            g(f"L_{name}_r{i+1}:")
    g(f"L_{name}_go:")
    g(f"""
    s_cmp_eq_u32 s20, 112
    s_cselect_b32 s36, 7, 8
    s_cmp_ge_u32 s22, s36
    s_cbranch_scc1 L_{name}_end
    s_lshl_b32 s36, s22, 2
    s_add_u32 s36, s36, s19
    v_lshrrev_b32 v3, 3, v2
    s_lshl_b32 s37, s36, 4
    v_add_u32 v3, s37, v3
    v_mul_lo_u32 v3, v3, s17
    v_and_b32 v4, 7, v2
    v_lshl_add_u32 v3, v4, 4, v3
    s_lshl_b32 s37, s18, 7
    v_add_u32 v3, s37, v3
    s_lshl_b32 s38, s17, 3                  ; 8 rows
    s_lshl_b32 s39, s22, 13
    s_mov_b32 s40, 0
    """)
    for i in range(8):
        g(f"s_add_u32 m0, s39, {1024*i}")
        g("s_nop 0")
        g.vmem(f"buffer_load_dwordx4 v3, s[8:11], s40 offen lds", f"w{i//2}")
        if i < 7: g("s_add_u32 s40, s40, s38")
    g(f"""
    v_lshrrev_b32 v5, 5, v2
    v_lshlrev_b32 v5, 9, v5                 ; h*4*128
    v_and_b32 v6, 15, v2
    v_lshrrev_b32 v7, 2, v6
    v_lshl_add_u32 v5, v7, 7, v5
    v_and_b32 v6, 3, v6
    v_lshl_add_u32 v5, v6, 3, v5
    v_bfe_u32 v6, v2, 4, 1
    v_lshl_add_u32 v5, v6, 5, v5
    v_add_u32 v5, s39, v5
    s_lshl_b32 s37, s18, 1
    s_mul_i32 s37, s37, s20
    s_add_u32 s37, s37, s36
    s_lshl_b32 s37, s37, 10
    s_add_u32 s37, s37, s21
    v_lshlrev_b32 v6, 4, v2
    v_add_u32 v6, s37, v6
    s_lshl_b32 s38, s20, 10
    v_add_u32 v7, s38, v6
    v_mov_b32 v12, 0
    v_mov_b32 v13, 0
    """)
    for sl in range(4):
        g.wait_vm(f"w{sl}")
        for u in range(2):
            b = 16 + 8*sl + 4*u
            g(f"ds_read_b64_tr_b16 v[{b}:{b+1}], v5 offset:{2048*sl + 64*u}")
            g(f"ds_read_b64_tr_b16 v[{b+2}:{b+3}], v5 offset:{2048*sl + 64*u + 1024}")
    for sl in range(4):
        g(f"s_waitcnt lgkmcnt({4*(3-sl)})")
        for u in range(2):
            b = 16 + 8*sl + 4*u
            g(f"buffer_store_dwordx4 v[{b}:{b+3}], v{6+u}, s[12:15], 0 offen offset:{1024*sl}")
    g(f"""
    s_cmp_eq_u32 s23, 0
    s_cbranch_scc1 L_{name}_end
    """)
    for sl in range(4):
        for u in range(2):
            b = 16 + 8*sl + 4*u
            for r in range(4):
                g(f"v_lshlrev_b32 v8, 16, v{b+r}")
                g(f"v_and_b32 v9, 0xffff0000, v{b+r}")
                g(f"v_add_f32 v{12+u}, v{12+u}, v8")
                g(f"v_add_f32 v{12+u}, v{12+u}, v9")
    g(f"""
    s_nop 1
    v_permlane32_swap_b32 v12, v13
    s_nop 1
    v_add_f32 v12, v12, v13
    s_barrier
    v_lshlrev_b32 v8, 2, v2
    s_lshl_b32 s37, s22, 8
    v_add_u32 v8, s37, v8
    ds_write_b32 v8, v12
    s_waitcnt lgkmcnt(0)
    s_barrier
    s_cmp_lg_u32 s22, 0
    s_cbranch_scc1 L_{name}_end
    v_lshlrev_b32 v8, 2, v2
    """)
    for k in range(8):
        g(f"ds_read_b32 v{16+k}, v8 offset:{256*k}")
    g("s_waitcnt lgkmcnt(0)")
    for k in range(1, 8):
        g(f"v_add_f32 v16, v16, v{16+k}")
    g(f"""
    s_lshl_b32 s37, s18, 8
    s_add_u32 s37, s37, s23
    v_add_u32 v8, s37, v8
    buffer_store_dword v16, v8, s[12:15], 0 offen
    L_{name}_end:
    s_endpgm
    """)
    return g.text() + kernel_desc(name, 64, 64), dict(name=name, grid=NUNITS, block=512, lds=65536)
```

```python
import sys, os
sys.path.insert(0, os.path.dirname(os.path.abspath(__file__)))
from common import *
import prep, gemm, attn, chain

NAME = "interleave_layers__softmax_full_mha__mixer_s_mlp__prompt"
HEADER = open("cdna_kernels/" + NAME + ".s.ref").read().split("; Override launch geometry")[0]

def build(extra_empty=0, mode="chain"):
    ks = {}
    def add(t):
        ks[t[1]['name']] = t
        return t[1]['name']
    p = add(prep.prep_kernel("prep_kernel"))
    qkv = add(gemm.qkv_kernel("qkv_kernel"))
    a0, a1 = attn.attn_kernels("attn0_kernel", "attn1_kernel")
    at0 = add(a0); at1 = add(a1)
    if mode == "chain":
        c0 = add(chain.chain_kernel("chain0_kernel", 0))
        c1 = add(chain.chain_kernel("chain1_kernel", 1))
        seq = [p, qkv, at0, c0, at1, c1]
        if os.environ.get("TOUCH"):
            stride = int(os.environ["TOUCH"])
            n = (45 << 20) // stride // 64 // 32
            body = ""
            for i in range(max(n, 1)):
                body += f"    buffer_load_dword v4, v1, s[8:11], s12 offen\n    s_add_u32 s12, s12, {64*stride}\n"
            tk = f""".text
.globl touch_kernel
.p2align 8
.type touch_kernel,@function
touch_kernel:
    s_load_dwordx2 s[4:5], s[0:1], 80
    s_lshr_b32 s6, s2, 3
    s_mul_i32 s12, s6, {max(n,1)*64*stride}
    s_mov_b32 s7, {stride}
    v_mul_lo_u32 v1, v0, s7
    s_waitcnt lgkmcnt(0)
    s_mov_b32 s8, s4
    s_mov_b32 s9, s5
    s_mov_b32 s10, {45 << 20}
    s_mov_b32 s11, 0x00020000
{body}
    s_waitcnt vmcnt(0)
    s_endpgm
""" + kernel_desc("touch_kernel", 16, 16)
            ks["touch_kernel"] = (tk, dict(name="touch_kernel", grid=256, block=64, lds=0))
            seq = ["touch_kernel"] + seq
        if os.environ.get("CODEWARM"):
            cw = f""".text
.globl codewarm_kernel
.p2align 8
.type codewarm_kernel,@function
codewarm_kernel:
    s_getpc_b64 s[4:5]
L_cw_pc:
    s_add_u32 s4, s4, (prep_kernel - L_cw_pc)
    s_addc_u32 s5, s5, -1
    s_lshr_b32 s6, s2, 3
    s_cmp_ge_u32 s6, 15
    s_cbranch_scc1 L_cw_end
    s_lshl_b32 s6, s6, 12
    v_lshlrev_b32 v1, 4, v0
    v_add_u32 v1, s6, v1
    global_load_dwordx4 v[4:7], v1, s[4:5]
    s_waitcnt vmcnt(0)
L_cw_end:
    s_endpgm
""" + kernel_desc("codewarm_kernel", 16, 16)
            ks["codewarm_kernel"] = (cw, dict(name="codewarm_kernel", grid=256, block=256, lds=0))
            seq = ["codewarm_kernel"] + seq
        return finish(ks, seq, extra_empty)
    wo = add(gemm.wo_kernel("wo_kernel"))
    w1 = add(gemm.w1_kernel("w1_kernel"))
    w2 = add(gemm.w2_kernel("w2_kernel"))
    w3 = add(gemm.w3_kernel("w3_kernel"))
    w4a = add(gemm.w4_kernel("w4a_kernel", False))
    w4b = add(gemm.w4_kernel("w4b_kernel", True))
    seq = [p, qkv, at, wo, w1, w2, w3, w4a, qkv, at, wo, w1, w2, w3, w4b]
    return finish(ks, seq, extra_empty)

def finish(ks, seq, extra_empty):
    if extra_empty:
        em = f""".text
.globl empty_kernel
.p2align 8
.type empty_kernel,@function
empty_kernel:
    s_endpgm
""" + kernel_desc("empty_kernel", 8, 16)
        ks["empty_kernel"] = (em, dict(name="empty_kernel", grid=256, block=256, lds=0))
        seq = seq + ["empty_kernel"] * extra_empty
    out = HEADER
    for n in seq:
        m = ks[n][1]
        out += f"; @launch kernel={n} grid=({m['grid']},1,1) block=({m['block']},1,1) lds={m['lds']}\n"
    out += '.amdgcn_target "amdgcn-amd-amdhsa--gfx950"\n'
    for n, (txt, m) in ks.items():
        out += txt
    return out, seq, ks

if __name__ == "__main__":
    extra = int(sys.argv[2]) if len(sys.argv) > 2 else 0
    out, seq, ks = build(extra)
    path = sys.argv[1] if len(sys.argv) > 1 else "cdna_kernels/" + NAME + ".s"
    open(path, "w").write(out)
    print("wrote", path, len(out), "bytes")
    import common, json
    if common.STAMPS:
        json.dump(common.STAMP_LABELS, open(path + ".stamps.json", "w"))
```

```python
from common import *

RS0, RS1 = [int(x) for x in os.environ.get('RS', '2,3').split(',')]
NOTOUCH = int(os.environ.get('NOTOUCH', '0'))
NOREP = int(os.environ.get('NOREP', '0'))
WT = os.environ.get('WT', 'sc1')
PRIO = bool(int(os.environ.get('PRIO', '1')))
BOUND_MAX = 60.0
XOFF = 131072
KNOFF = XOFF + 16384
EXCH = 0

def attn_kernels(name0, name1):
    name = "attn"
    S_OBUF = 50
    g = Gen()
    g(kernel_header(name1))
    g(f"s_mov_b32 s{S_OBUF}, {WS_OB}")
    g(f"s_mov_b32 s{S_OBUF+1}, {WS_KN + 8192}")
    g(f"s_mov_b32 s{S_OBUF+2}, 1")
    g(f"s_branch L_{name}_body")
    g(kernel_header(name0))
    g(f"s_mov_b32 s{S_OBUF}, {WS_OA}")
    g(f"s_mov_b32 s{S_OBUF+1}, {WS_KN}")
    g(f"s_mov_b32 s{S_OBUF+2}, 0")
    g(f"L_{name}_body:")
    txt, meta0 = attn_body(g, name, S_OBUF)
    d0 = kernel_desc(name0, 112, 64); d1 = kernel_desc(name1, 112, 64)
    m0 = dict(meta0, name=name0); m1 = dict(meta0, name=name1)
    return (txt + d0 + d1, m0), ("", m1)

def attn_body(g, name, S_OBUF):
    g.stamp_vgpr = 120
    S_WS = 12
    S_HEAD, S_QB, S_WAVE, S_T, S_KH = 20, 21, 22, 23, 24
    S_TMP = 30
    S_MASK = 40
    S_DS, S_DL = 42, 43
    S_KP, S_KN = 44, 46
    vQ = 4
    vK = 8
    vV = 16
    vP = 24
    vSa = 32
    vSb = 48
    vO = 64
    vM = 80
    vKa, vVa = 96, 97
    t0 = 98
    vMx = 106
    g.stamp("start")
    g(f"""
    s_cmp_ge_u32 s2, 256
    s_cbranch_scc1 L_{name}_end
    s_load_dwordx2 s[6:7], s[0:1], {KA_WS}
    v_lshrrev_b32 v1, 6, v0
    v_and_b32 v0, 63, v0
    s_and_b32 s{S_TMP}, s2, 7
    s_lshr_b32 s{S_TMP+1}, s2, 3
    v_readfirstlane_b32 s{S_WAVE}, v1
    s_and_b32 s{S_QB}, s{S_TMP+1}, 7
    s_lshr_b32 s{S_TMP+1}, s{S_TMP+1}, 3
    s_lshl_b32 s{S_HEAD}, s{S_TMP}, 2
    s_add_u32 s{S_HEAD}, s{S_HEAD}, s{S_TMP+1}
    s_and_b32 s{S_T}, s{S_WAVE}, 7
    s_lshr_b32 s{S_KH}, s{S_WAVE}, 3
    s_lshl_b32 s{S_TMP}, s{S_QB}, 3
    s_add_u32 s{S_T}, s{S_T}, s{S_TMP}
    v_lshlrev_b32 v2, 4, v0                   ; lane*16
    s_and_b32 s{S_TMP}, s{S_WAVE}, 3
    s_lshl_b32 s{S_TMP+1}, s{S_KH}, 5
    s_add_u32 s{S_TMP}, s{S_TMP}, s{S_TMP+1}
    s_lshl_b32 s{S_TMP}, s{S_TMP}, 10          ; tile*1024
    s_bfe_u32 s{S_TMP+1}, s{S_WAVE}, 0x10002   ; kind
    s_lshl_b32 s{S_TMP+2}, s{S_TMP+1}, 16
    s_add_u32 s{S_DL}, s{S_TMP}, s{S_TMP+2}
    s_mul_i32 s{S_TMP+2}, s{S_TMP+1}, {WS_V - WS_K}
    s_add_u32 s{S_TMP}, s{S_TMP}, s{S_TMP+2}
    s_lshl_b32 s{S_TMP+2}, s{S_HEAD}, 16
    s_add_u32 s{S_TMP}, s{S_TMP}, s{S_TMP+2}
    s_add_u32 s{S_DS}, s{S_TMP}, {WS_K}
    s_waitcnt lgkmcnt(0)
    """)
    srd(g, S_WS, 6, 7, WS_USED)
    def dma(c):
        g(f"s_add_u32 m0, s{S_DL}, {c*4096}")
        g(f"s_add_u32 s{S_TMP+4}, s{S_DS}, {c*4096}")
        g.vmem(f"buffer_load_dwordx4 v2, s[{S_WS}:{S_WS+3}], s{S_TMP+4} offen lds", f"d{c}")
    name_ = name
    S_RW = 16
    S_RK, S_RD, S_RC, S_RROW, S_RL, S_RA = 53, 54, 55, 56, 57, 58
    vR = 80
    def repack_setup():
        skip = f"L_{name_}_rp1"
        name = name_
        g(f"""
        s_mov_b32 s{S_RA}, 0
        s_cmp_lg_u32 s{S_OBUF+2}, {5 if NOREP else 0}
        s_cbranch_scc1 {skip}
        s_cmp_lg_u32 s{S_OBUF+2}, 0
        s_cbranch_scc1 {skip}
        s_lshl_b32 s{S_TMP+3}, s2, 4
        s_add_u32 s{S_TMP+3}, s{S_TMP+3}, s{S_WAVE}
        s_lshl_b32 s{S_TMP+3}, s{S_TMP+3}, 1
        s_cmp_ge_u32 s{S_TMP+3}, 6656
        s_cbranch_scc1 {skip}
        s_lshl_b32 s{S_RD}, s{S_TMP+3}, 10
        s_add_u32 s{S_RD}, s{S_RD}, {WS_WQ}
        """)
        mats = [(0, 1536, KA_WQKV, 3*D*2, D*3*D*2, WS_CSQ, 32), (1536, 2048, KA_WO, D*2, D*D*2, 0, 32), (2048, 2560, KA_W1, D*2, D*D*2, WS_CS1, 32),
                (2560, 3072, KA_W2, D*2, D*D*2, 0, 32), (3072, 4864, KA_W3, F*2, D*F*2, WS_CS3, 32), (4864, 6656, KA_W4, D*2, F*D*2, 0, 112)]
        for i, (lo, hi, ka, rowb, matb, cs, ns) in enumerate(mats):
            if i < len(mats) - 1:
                g(f"s_cmp_ge_u32 s{S_TMP+3}, {hi}")
                g(f"s_cbranch_scc1 L_{name}_rm{i+1}")
            g(f"s_load_dwordx2 s[{S_RW}:{S_RW+1}], s[0:1], {ka}")
            g(f"s_sub_u32 s{S_TMP+4}, s{S_TMP+3}, {lo}")
            if ns == 32:
                g(f"s_lshr_b32 s{S_TMP+5}, s{S_TMP+4}, 5")
                g(f"s_and_b32 s{S_TMP+4}, s{S_TMP+4}, 31")
            else:
                g(f"s_mul_i32 s{S_TMP+5}, s{S_TMP+4}, 2341")
                g(f"s_lshr_b32 s{S_TMP+5}, s{S_TMP+5}, 18")
                g(f"s_mul_i32 s{S_TMP+8}, s{S_TMP+5}, 112")
                g(f"s_sub_u32 s{S_TMP+4}, s{S_TMP+4}, s{S_TMP+8}")
            g(f"s_mov_b32 s{S_RROW}, {rowb}")
            g(f"s_mov_b32 s{S_RW+2}, {hex(matb)}")
            if cs:
                g(f"s_lshl_b32 s{S_RC}, s{S_TMP+5}, 7")
                g(f"s_add_u32 s{S_RC}, s{S_RC}, {cs}")
            else:
                g(f"s_mov_b32 s{S_RC}, 0")
            if i < len(mats) - 1:
                g(f"s_branch L_{name}_rgo")
                g(f"L_{name}_rm{i+1}:")
        g(f"""
        L_{name}_rgo:
        s_mov_b32 s{S_RW+3}, 0x00020000
        s_lshl_b32 s{S_TMP+4}, s{S_TMP+4}, 4
        s_mul_i32 s{S_RK}, s{S_TMP+4}, s{S_RROW}
        s_lshl_b32 s{S_TMP+5}, s{S_TMP+5}, 6
        s_add_u32 s{S_RK}, s{S_RK}, s{S_TMP+5}
        v_lshrrev_b32 v{vR}, 2, v0
        v_mul_lo_u32 v{vR}, v{vR}, s{S_RROW}
        v_and_b32 v{vR+1}, 3, v0
        v_lshl_add_u32 v{vR}, v{vR+1}, 4, v{vR}
        s_lshl_b32 s{S_RL}, s{S_WAVE}, 10
        s_add_u32 s{S_RL}, s{S_RL}, {XOFF}
        v_lshrrev_b32 v{vR+1}, 5, v0
        v_lshlrev_b32 v{vR+1}, 8, v{vR+1}
        v_and_b32 v{vR+2}, 15, v0
        v_lshrrev_b32 v{vR+3}, 2, v{vR+2}
        v_lshl_add_u32 v{vR+1}, v{vR+3}, 6, v{vR+1}
        v_and_b32 v{vR+2}, 3, v{vR+2}
        v_lshl_add_u32 v{vR+1}, v{vR+2}, 3, v{vR+1}
        v_bfe_u32 v{vR+2}, v0, 4, 1
        v_lshl_add_u32 v{vR+1}, v{vR+2}, 5, v{vR+1}
        v_add_u32 v{vR+1}, s{S_RL}, v{vR+1}
        v_mov_b32 v{vR+2}, 0
        v_mov_b32 v{vR+3}, 0
        s_mov_b32 s{S_RA}, 1
        {skip}:
        """)
    def repack_issue(u=''):
        skip = f"L_{name_}{u}_ri"
        g(f"""
        s_cmp_eq_u32 s{S_RA}, 0
        s_cbranch_scc1 {skip}
        s_mov_b32 m0, s{S_RL}
        s_nop 0
        buffer_load_dwordx4 v{vR}, s[{S_RW}:{S_RW+3}], s{S_RK} offen lds
        {skip}:
        """)
    def repack_step(blk, u=''):
        name = name_ + u
        skip, nocs = f"L_{name}_rf{blk}", f"L_{name}_rn{blk}"
        g(f"""
        s_cmp_eq_u32 s{S_RA}, 0
        s_cbranch_scc1 {skip}
        s_waitcnt vmcnt(0)
        ds_read_b64_tr_b16 v[{vR+4}:{vR+5}], v{vR+1}
        ds_read_b64_tr_b16 v[{vR+6}:{vR+7}], v{vR+1} offset:512
        s_waitcnt lgkmcnt(0)
        buffer_store_dwordx4 v[{vR+4}:{vR+7}], v2, s[{S_WS}:{S_WS+3}], s{S_RD} offen offset:{1024*blk} {WT}
        """)
        for r in range(4):
            g(f"v_lshlrev_b32 v{vR+8}, 16, v{vR+4+r}")
            g(f"v_and_b32 v{vR+9}, 0xffff0000, v{vR+4+r}")
            g(f"v_pk_add_f32 v[{vR+2}:{vR+3}], v[{vR+2}:{vR+3}], v[{vR+8}:{vR+9}]")
        if blk == 0:
            g(f"""
            s_lshl_b32 s{S_TMP+4}, s{S_RROW}, 4
            s_add_u32 s{S_RK}, s{S_RK}, s{S_TMP+4}
            s_mov_b32 m0, s{S_RL}
            s_nop 0
            buffer_load_dwordx4 v{vR}, s[{S_RW}:{S_RW+3}], s{S_RK} offen lds
            """)
        else:
            g(f"""
            s_cmp_eq_u32 s{S_RC}, 0
            s_cbranch_scc1 {nocs}
            v_add_f32 v{vR+2}, v{vR+2}, v{vR+3}
            v_mov_b32 v{vR+8}, v{vR+2}
            s_nop 1
            v_permlane32_swap_b32 v{vR+2}, v{vR+8}
            s_nop 1
            v_add_f32 v{vR+2}, v{vR+2}, v{vR+8}
            v_lshlrev_b32 v{vR+8}, 2, v0
            s_mov_b32 exec_hi, 0
            buffer_atomic_add_f32 v{vR+2}, v{vR+8}, s[{S_WS}:{S_WS+3}], s{S_RC} offen
            s_mov_b64 exec, -1
            {nocs}:
            """)
        g(f"{skip}:")
    dma(0)
    g(f"""
    s_lshl_b32 s{S_TMP+3}, s{S_HEAD}, 16
    s_lshl_b32 s{S_TMP+4}, s{S_T}, 10
    s_add_u32 s{S_TMP+3}, s{S_TMP+3}, s{S_TMP+4}
    s_add_u32 s{S_TMP+3}, s{S_TMP+3}, {WS_Q}
    """)
    g.vmem(f"buffer_load_dwordx4 v[{vQ}:{vQ+3}], v2, s[{S_WS}:{S_WS+3}], s{S_TMP+3} offen", "q")
    g(f"""
    s_lshl_b32 s{S_TMP+3}, s{S_HEAD}, 8
    s_add_u32 s{S_TMP+3}, s{S_TMP+3}, s{S_OBUF+1}
    v_lshlrev_b32 v{t0+1}, 2, v0
    """)
    g.vmem(f"buffer_load_dword v{t0+2}, v{t0+1}, s[{S_WS}:{S_WS+3}], s{S_TMP+3} offen", "q")
    dma(1)
    g(f"""
    s_lshl_b32 s{S_TMP}, s{S_KH}, 15
    v_add_u32 v{vKa}, s{S_TMP}, v2
    v_lshrrev_b32 v{t0+3}, 5, v0
    v_lshlrev_b32 v{t0+3}, 8, v{t0+3}          ; h*256
    v_and_b32 v{t0+4}, 15, v0
    v_lshl_add_u32 v{t0+3}, v{t0+4}, 4, v{t0+3}
    s_add_u32 s{S_TMP}, s{S_TMP}, 65536
    v_add_u32 v{vVa}, s{S_TMP}, v{t0+3}
    s_mov_b32 s{S_MASK}, 0x0000ffff
    s_mov_b32 s{S_MASK+1}, 0x0000ffff
    """)
    for i in range(8):
        g(f"v_mov_b32 v{vV+i}, 0x3f803f80")
    for i in range(16):
        g(f"v_mov_b32 v{vO+i}, 0")
    repack_setup()
    g.wait_vm("q")
    qn = t0 + 4
    g(f"v_lshlrev_b32 v{t0}, 16, v{vQ}")
    g(f"v_and_b32 v{t0+1}, 0xffff0000, v{vQ}")
    g(f"v_mul_f32 v{qn}, v{t0}, v{t0}")
    g(f"v_fmac_f32 v{qn}, v{t0+1}, v{t0+1}")
    for i in range(1, 4):
        g(f"v_lshlrev_b32 v{t0}, 16, v{vQ+i}")
        g(f"v_and_b32 v{t0+1}, 0xffff0000, v{vQ+i}")
        g(f"v_fmac_f32 v{qn}, v{t0}, v{t0}")
        g(f"v_fmac_f32 v{qn}, v{t0+1}, v{t0+1}")
    g(f"v_mov_b32 v{qn+1}, v{qn}")
    g("s_nop 1")
    g(f"v_permlane32_swap_b32 v{qn}, v{qn+1}")
    g("s_nop 1")
    g(f"v_add_f32 v{qn}, v{qn}, v{qn+1}")
    g(f"v_mov_b32 v{vMx}, 0")
    kn = t0 + 2
    g(f"s_cmp_lg_u32 s{S_WAVE}, 0")
    g(f"s_cbranch_scc1 L_{name}_nokn")
    for ror in (8, 4, 2, 1):
        g("s_nop 1")
        g(f"v_max_f32_dpp v{kn}, v{kn}, v{kn} row_ror:{ror} row_mask:0xf bank_mask:0xf")
    g(f"v_mov_b32 v{kn+1}, v{kn}")
    g("s_nop 1")
    g(f"v_permlane16_swap_b32 v{kn}, v{kn+1}")
    g("s_nop 1")
    g(f"v_max_f32 v{kn}, v{kn}, v{kn+1}")
    g(f"v_mov_b32 v{kn+1}, v{kn}")
    g("s_nop 1")
    g(f"v_permlane32_swap_b32 v{kn}, v{kn+1}")
    g("s_nop 1")
    g(f"v_max_f32 v{kn}, v{kn}, v{kn+1}")
    g(f"v_mov_b32 v{t0}, {KNOFF}")
    g(f"ds_write_b32 v{t0}, v{kn}")
    g("s_waitcnt lgkmcnt(0)")
    g(f"L_{name}_nokn:")
    g.stamp("pre_d0")
    dma(2); dma(3)
    g.wait_vm(["d0", "d1"])
    g("s_barrier")
    g.stamp("d0_landed")
    g(f"v_mov_b32 v{t0}, {KNOFF}")
    g(f"ds_read_b32 v{kn}, v{t0}")
    g(f"ds_read_b128 v[{vK}:{vK+3}], v{vKa} offset:0")
    g("s_waitcnt lgkmcnt(0)")
    g(f"v_mul_f32 v{qn}, v{kn}, v{qn}")
    g(f"v_cmp_nge_f32 vcc, {fl(BOUND_MAX*BOUND_MAX/1.04)}, v{qn}")
    g("s_nop 4")
    g(f"s_cbranch_vccnz L_{name}_slow")

    def touch():
        if NOTOUCH:
            g.vmem(f"buffer_load_dword v109, v2, s[{S_WS}:{S_WS+3}], 0 offen", 'pf')
            return
        nt = (WS_TOUCH1 - WS_TOUCH0) // 8192
        g(f"""
        s_lshl_b32 s{S_TMP+3}, s2, 4
        s_add_u32 s{S_TMP+3}, s{S_TMP+3}, s{S_WAVE}
        s_cmp_ge_u32 s{S_TMP+3}, {nt}
        s_cselect_b32 s{S_TMP+3}, 0, s{S_TMP+3}
        s_lshl_b32 s{S_TMP+3}, s{S_TMP+3}, 13
        s_add_u32 s{S_TMP+3}, s{S_TMP+3}, {WS_TOUCH0}
        v_lshlrev_b32 v108, 7, v0
        """)
        g.vmem(f"buffer_load_dword v109, v108, s[{S_WS}:{S_WS+3}], s{S_TMP+3} offen", "pf")
    def kread(dst, off):
        g(f"ds_read_b128 v[{dst}:{dst+3}], v{vKa} offset:{off}")
    def vread(off):
        g(f"s_mov_b64 exec, s[{S_MASK}:{S_MASK+1}]")
        g(f"ds_read_b128 v[{vV}:{vV+3}], v{vVa} offset:{off}")
        g(f"ds_read_b128 v[{vV+4}:{vV+7}], v{vVa} offset:{off+512}")
        g("s_mov_b64 exec, -1")
    def qk(dstS, kreg):
        g(f"v_mfma_f32_32x32x16_bf16 v[{dstS}:{dstS+15}], v[{kreg}:{kreg+3}], v[{vQ}:{vQ+3}], 0")
    def tile(cur, nxt, kcur_next, kreg_next2, off_k2, off_v1, do_qk=True, do_k=True, do_v=True, mid=None):
        if do_qk:
            g("s_waitcnt lgkmcnt(2)")
            qk(nxt, kcur_next)
            if do_k:
                kread(kreg_next2, off_k2)
        if mid: mid()
        for i in range(8):
            g(f"v_exp_f32 v{cur+i}, v{cur+i}")
        for i in range(4):
            g(f"v_cvt_pk_bf16_f32 v{vP+i}, v{cur+2*i}, v{cur+2*i+1}")
        g(f"v_exp_f32 v{cur+8}, v{cur+8}")
        g(f"s_waitcnt lgkmcnt({1 if (do_qk and do_k) else 0})")
        g(f"v_mfma_f32_32x32x16_bf16 v[{vO}:{vO+15}], v[{vV}:{vV+3}], v[{vP}:{vP+3}], v[{vO}:{vO+15}]")
        for i in range(9, 16):
            g(f"v_exp_f32 v{cur+i}, v{cur+i}")
        for i in range(4, 8):
            g(f"v_cvt_pk_bf16_f32 v{vP+i}, v{cur+2*i}, v{cur+2*i+1}")
        g("s_nop 1")
        g(f"v_mfma_f32_32x32x16_bf16 v[{vO}:{vO+15}], v[{vV+4}:{vV+7}], v[{vP+4}:{vP+7}], v[{vO}:{vO+15}]")
        if do_v:
            vread(off_v1)
    if PRIO: g("s_setprio 3")
    qk(vSa, vK)
    kread(vK+4, 1024)
    vread(0)
    g("s_nop 7")
    def tiles(n, base=0, mids=()):
        for i in range(n):
            mid = mids[i] if i < len(mids) else None
            o = base + 1024 * i
            if i % 2 == 0: tile(vSa, vSb, vK+4, vK, o + 2048, o + 1024, mid=mid)
            else:          tile(vSb, vSa, vK, vK+4, o + 2048, o + 1024, mid=mid)
    def advance(n):
        g(f"v_add_u32 v{vKa}, {1024*n}, v{vKa}")
        g(f"v_add_u32 v{vVa}, {1024*n}, v{vVa}")
    tiles(6, 0, [lambda: (dma(4), dma(5)), lambda: (dma(6), dma(7))])
    advance(6)
    g.stamp("l0_done")
    g("s_waitcnt vmcnt(0)")
    g("s_barrier")
    g.stamp("all_landed")
    repack_issue()
    touch()
    g(f"s_cmp_lg_u32 s{S_WAVE}, 15")
    g(f"s_cbranch_scc1 L_{name}_ncp")
    g(f"s_lshr_b32 s{S_TMP+5}, s2, 3")
    code_prefetch(g, name, 108, S_TMP+2, S_TMP+5)
    g(f"L_{name}_ncp:")
    segs = [(1, 3), (2, 2), (2, 1), (1, 0)]
    for si, (n_it, prio) in enumerate(segs):
        if si == RS0: repack_step(0)
        if si == RS1: repack_step(1)
        if PRIO: g(f"s_setprio {prio}")
        if n_it > 1:
            g(f"s_mov_b32 s{S_TMP}, {n_it}")
            g(f"L_{name}_l1_{si}:")
        tiles(4)
        advance(4)
        if n_it > 1:
            g(f"s_sub_u32 s{S_TMP}, s{S_TMP}, 1")
            g(f"s_cmp_lg_u32 s{S_TMP}, 0")
            g(f"s_cbranch_scc1 L_{name}_l1_{si}")
    tile(vSa, vSb, vK+4, vK, 0, 1024, do_k=False)
    tile(vSb, vSa, vK, vK+4, 0, 0, do_qk=False, do_v=False)
    g.stamp("loop_done")
    g(f"s_branch L_{name}_fin")

    g(f"L_{name}_slow:")
    for c in range(4, 8):
        dma(c)
    g("s_waitcnt vmcnt(0)")
    g("s_barrier")
    repack_issue('s'); repack_step(0, 's'); repack_step(1, 's')
    vm = vMx
    g(f"v_mov_b32 v{vm}, 0xff800000")
    g(f"s_mov_b32 s{S_TMP}, 32")
    g(f"L_{name}_sl:")
    kread(vK, 0)
    vread(0)
    g("s_waitcnt lgkmcnt(0)")
    g(f"v_mfma_f32_32x32x16_bf16 v[{vSa}:{vSa+15}], v[{vK}:{vK+3}], v[{vQ}:{vQ+3}], 0")
    g("s_nop 15")
    g(f"v_max3_f32 v{t0+1}, v{vSa}, v{vSa+1}, v{vSa+2}")
    for i in range(3, 15, 2):
        g(f"v_max3_f32 v{t0+1}, v{t0+1}, v{vSa+i}, v{vSa+i+1}")
    g(f"v_max_f32 v{t0+1}, v{t0+1}, v{vSa+15}")
    g(f"v_mov_b32 v{t0+2}, v{t0+1}")
    g("s_nop 1")
    g(f"v_permlane32_swap_b32 v{t0+1}, v{t0+2}")
    g("s_nop 1")
    g(f"v_max3_f32 v{t0+1}, v{t0+1}, v{t0+2}, v{vm}")
    g(f"v_sub_f32 v{t0+2}, v{vm}, v{t0+1}")
    g(f"v_exp_f32 v{t0+2}, v{t0+2}")
    g(f"v_mov_b32 v{vm}, v{t0+1}")
    for i in range(16):
        g(f"v_mul_f32 v{vO+i}, v{vO+i}, v{t0+2}")
    for i in range(16):
        g(f"v_sub_f32 v{vSa+i}, v{vSa+i}, v{vm}")
    for i in range(16):
        g(f"v_exp_f32 v{vSa+i}, v{vSa+i}")
    g("s_nop 0")
    for i in range(8):
        g(f"v_cvt_pk_bf16_f32 v{vP+i}, v{vSa+2*i}, v{vSa+2*i+1}")
    g("s_nop 1")
    g(f"v_mfma_f32_32x32x16_bf16 v[{vO}:{vO+15}], v[{vV}:{vV+3}], v[{vP}:{vP+3}], v[{vO}:{vO+15}]")
    g(f"v_mfma_f32_32x32x16_bf16 v[{vO}:{vO+15}], v[{vV+4}:{vV+7}], v[{vP+4}:{vP+7}], v[{vO}:{vO+15}]")
    g(f"v_add_u32 v{vKa}, 1024, v{vKa}")
    g(f"v_add_u32 v{vVa}, 1024, v{vVa}")
    g("s_nop 15")
    g(f"s_sub_u32 s{S_TMP}, s{S_TMP}, 1")
    g(f"s_cmp_lg_u32 s{S_TMP}, 0")
    g(f"s_cbranch_scc1 L_{name}_sl")

    g(f"L_{name}_fin:")
    g(f"""
    s_and_b32 s{S_TMP}, s{S_WAVE}, 7
    s_mul_i32 s{S_TMP}, s{S_TMP}, 2560
    s_add_u32 s{S_TMP}, s{S_TMP}, {EXCH}
    v_lshlrev_b32 v{t0}, 2, v0
    v_add_u32 v{t0}, s{S_TMP}, v{t0}
    s_waitcnt lgkmcnt(0)
    s_barrier
    s_nop 15
    s_cmp_eq_u32 s{S_KH}, 0
    s_cbranch_scc1 L_{name}_lo
    """)
    for i in range(9):
        g(f"ds_write_b32 v{t0}, v{vO+i} offset:{256*i}")
    g(f"ds_write_b32 v{t0}, v{vMx} offset:{256*9}")
    g("s_waitcnt lgkmcnt(0)")
    g("s_barrier")
    g("s_endpgm")
    g(f"L_{name}_lo:")
    g("s_barrier")
    for i in range(10):
        g(f"ds_read_b32 v{vSa+i}, v{t0} offset:{256*i}")
    g(f"""
    s_lshl_b32 s{S_TMP}, s{S_T}, 15
    s_lshl_b32 s{S_TMP+1}, s{S_HEAD}, 10
    s_add_u32 s{S_TMP}, s{S_TMP}, s{S_TMP+1}
    s_add_u32 s{S_TMP}, s{S_TMP}, s{S_OBUF}
    s_waitcnt lgkmcnt(0)
    v_max_f32 v{t0}, v{vMx}, v{vSa+9}
    v_sub_f32 v{t0+1}, v{vMx}, v{t0}
    v_sub_f32 v{t0+2}, v{vSa+9}, v{t0}
    v_exp_f32 v{t0+1}, v{t0+1}
    v_exp_f32 v{t0+2}, v{t0+2}
    s_nop 0
    """)
    for i in range(9):
        g(f"v_mul_f32 v{vO+i}, v{vO+i}, v{t0+1}")
    for i in range(9):
        g(f"v_fmac_f32 v{vO+i}, v{vSa+i}, v{t0+2}")
    g(f"v_rcp_f32 v{t0+1}, v{vO+8}")
    g("s_nop 0")
    for i in range(8):
        g(f"v_mul_f32 v{vO+i}, v{vO+i}, v{t0+1}")
    for i in range(4):
        g(f"v_cvt_pk_bf16_f32 v{vP+i}, v{vO+2*i}, v{vO+2*i+1}")
    g(f"buffer_store_dwordx4 v[{vP}:{vP+3}], v2, s[{S_WS}:{S_WS+3}], s{S_TMP} offen")
    if STAMPS:
        g("s_waitcnt vmcnt(0)")
        g.stamp("stores_done")
    g.stamp_flush(1, S_WAVE)
    g(f"L_{name}_end:")
    g("s_endpgm")
    return g.text(), dict(name=name, grid=256, block=1024, lds=KNOFF + 64)
```

```python
from common import *
from gemm import (Cfg, LOG2E, GELU_C0, GELU_C1, EPS, QSCALE, unpack8, gelu16, ln_affine, rsq_eps, mfma_drain)

S_WS, S_OUT = 12, 16
S_TB, S_J, S_WAVE, S_TT, S_NG, S_LW = 20, 21, 22, 23, 24, 25
S_KB, S_DMA, S_T, S_MODE = 26, 27, 28, 29
S_TMP = 30
S_EXEC = 40
S_PART, S_SLAB = 44, 45
S_CNT = 46
S_POLL = 47
S_CB = 48
S_CSO = 51
S_CO = 50

RING = 147456
SCR = RING
SCR_CS = SCR + 1024
SCR_ST = SCR + 2048
LDS_BYTES = RING + 10240

K_HS, K_P3, K_P4, K_HL, K_HR, K_P5, K_P6, K_P7 = range(8)
POLL_LIMIT = 1 << 18

def mk(key, KS, NTn, NB, NW, LA, w_off, tiles_j, tile_list, ng_stride, tile_stride, swapped, b_off, shift=False):
    c = Cfg()
    c.key, c.KS, c.NTn, c.NB, c.NW, c.LA = key, KS, NTn, NB, NW, LA
    c.w_off, c.tiles_j, c.tile_list, c.ng_stride, c.tile_stride, c.swapped = w_off, tiles_j, tile_list, ng_stride, tile_stride, swapped
    c.b_off, c.shift = b_off, shift
    c.SB = (2 + NTn) * 1024; c.CB = 4 * c.SB; c.NC = KS // 4; c.nup = min(NB, c.NC)
    assert NB * c.CB <= RING
    return c

def bufs(layer):
    return (WS_X, WS_OA) if layer == 0 else (WS_OA, WS_OB)

def phases(layer):
    XS, OB = bufs(layer)
    ph = [mk("p3", 32, 2, 8, 1, 4, WS_WO, 2, [0, 1], 1, 1, [False], OB),
          mk("p4", 32, 2, 8, 1, 4, WS_W1, 2, [0, 1], 1, 1, [False], XS),
          mk("p5", 32, 2, 8, 1, 4, WS_W2, 2, [0, 1], 1, 1, [False], OB, shift=True),
          mk("p6", 32, 7, 4, 4, 2, WS_W3, 7, list(range(7)), 3, 1, [False]*4, XS),
          mk("p7", 112, 2, 8, 1, 4, WS_W4, 2, [0, 1], 1, 1, [False], WS_G)]
    if layer == 0:
        ph.append(mk("p1", 32, 6, 4, 3, 3, WS_WQ, 2, [0, 1, 16, 17, 32, 33], 1, 2, [False, False, True], WS_OA))
    return ph
DEP = {"p4": K_P3, "p5": K_P4, "p6": K_P5, "p7": K_P6, "p1": K_P7}
SIG = {"p3": K_P3, "p4": K_P4, "p5": K_P5, "p6": K_P6, "p7": K_P7}

def loader(g, name, layer):
    if not int(os.environ.get('LSTAMPS', '0')):
        g.stamp = lambda *a, **k: None
        g.stamp_flush = lambda *a, **k: None
    ph = phases(layer)
    vA, vB, t0 = 2, 4, 12
    def setup_A(c):
        g(f"""
        s_mul_i32 s{S_TMP}, s{S_J}, {c.tiles_j * c.KS * 1024}
        s_lshl_b32 s{S_TMP+1}, s{S_LW}, 10
        s_add_u32 s{S_TMP}, s{S_TMP}, s{S_TMP+1}
        s_add_u32 s{S_TMP}, s{S_TMP}, {c.w_off}
        v_lshlrev_b32 v{vA}, 4, v0
        v_add_u32 v{vA}, s{S_TMP}, v{vA}
        s_mul_i32 s{S_DMA}, s{S_LW}, {c.SB}
        """)
    def setup_B(c):
        tstride = c.KS * 1024
        if not c.shift:
            g(f"""
            s_lshl_b32 s{S_TMP}, s{S_TB}, 1
            s_mul_i32 s{S_TMP}, s{S_TMP}, {tstride}
            s_lshl_b32 s{S_TMP+1}, s{S_LW}, 10
            s_add_u32 s{S_TMP}, s{S_TMP}, s{S_TMP+1}
            s_add_u32 s{S_TMP}, s{S_TMP}, {c.b_off}
            v_lshlrev_b32 v{vB}, 4, v0
            v_add_u32 v{vB}, s{S_TMP}, v{vB}
            v_add_u32 v{vB+1}, {tstride}, v{vB}
            """)
        else:
            t1, t2, t3 = t0+1, t0+2, t0+3
            g(f"""
            v_lshrrev_b32 v{t1}, 5, v0
            v_lshlrev_b32 v{t1}, 9, v{t1}             ; h*512
            s_lshl_b32 s{S_TMP}, s{S_LW}, 10
            v_add_u32 v{t1}, s{S_TMP}, v{t1}
            s_lshl_b32 s{S_TMP}, s{S_TB}, 16
            s_add_u32 s{S_TMP}, s{S_TMP}, {c.b_off}
            s_lshl_b32 s{S_TMP+1}, s{S_TB}, 15
            s_add_u32 s{S_TMP+2}, s{S_TMP+1}, {WS_HALO - 32768 + 32}
            s_add_u32 s{S_TMP+3}, s{S_TMP+1}, {WS_HALO + 32768 - 1024}
            s_cmp_eq_u32 s{S_TB}, 0
            s_cselect_b32 s{S_TMP+2}, 0x80000000, s{S_TMP+2}
            s_cmp_eq_u32 s{S_TB}, 31
            s_cselect_b32 s{S_TMP+3}, 0x80000000, s{S_TMP+3}
            v_and_b32 v{t0}, 31, v0
            """)
            for gi, dl in enumerate((-1, 1, -2, 2)):
                for tile in range(2):
                    r = vB + 2*gi + tile
                    g(f"v_add_u32 v{r}, {32*tile + dl}, v{t0}")
                    edge = (tile == 0 and dl < 0) or (tile == 1 and dl > 0)
                    g(f"v_bfe_u32 v{t2}, v{r}, 5, 1")
                    g(f"v_lshlrev_b32 v{t2}, 15, v{t2}")
                    g(f"v_and_b32 v{t3}, 31, v{r}")
                    g(f"v_lshl_add_u32 v{t2}, v{t3}, 4, v{t2}")
                    g(f"v_add_u32 v{t2}, s{S_TMP}, v{t2}")
                    if edge:
                        sb = S_TMP+2 if dl < 0 else S_TMP+3
                        g(f"v_lshlrev_b32 v{t3}, 4, v{r}")
                        g(f"v_add_u32 v{t3}, s{sb}, v{t3}")
                        if dl < 0:
                            g(f"v_cmp_gt_i32 vcc, 0, v{r}")
                        else:
                            g(f"v_cmp_lt_i32 vcc, 63, v{r}")
                        g("s_nop 1")
                        g(f"v_cndmask_b32 v{t2}, v{t2}, v{t3}, vcc")
                    g(f"v_add_u32 v{r}, v{t2}, v{t1}")
    CS_SRC = {"p4": (WS_CS1, 256, False), "p6": (WS_CS3, 896, False), "p1": (WS_CSQ, 256, True)}
    ST_SRC = {"p4": WS_SX1, "p6": WS_SY, "p1": WS_SXB}
    def part_cs(c):
        if c.key not in CS_SRC: return
        off, per_j, seg3 = CS_SRC[c.key]
        g(f"s_mul_i32 s{S_KB}, s{S_J}, {per_j}")
        g(f"s_add_u32 s{S_KB}, s{S_KB}, {off}")
        if seg3:
            g(f"v_lshrrev_b32 v{t0}, 4, v0")
            g(f"v_min_u32 v{t0}, 2, v{t0}")
            g(f"v_lshlrev_b32 v{t0}, 11, v{t0}")
            g(f"v_and_b32 v{t0+1}, 15, v0")
            g(f"v_lshl_add_u32 v{t0}, v{t0+1}, 4, v{t0}")
        else:
            g(f"v_lshlrev_b32 v{t0}, 4, v0")
        g(f"s_mov_b32 m0, {SCR_CS}")
        g("s_nop 0")
        g.vmem(f"buffer_load_dwordx4 v{t0}, s[{S_WS}:{S_WS+3}], s{S_KB} offen lds", f"{c.key}_0")
    def part_st(c):
        if c.key not in ST_SRC: return
        g(f"s_lshl_b32 s{S_KB}, s{S_TB}, 13")
        g(f"s_lshl_b32 s{S_TMP}, s{S_LW}, 11")
        g(f"s_add_u32 s{S_KB}, s{S_KB}, s{S_TMP}")
        g(f"s_add_u32 s{S_KB}, s{S_KB}, {ST_SRC[c.key]}")
        g(f"s_add_u32 m0, s{S_TMP}, {SCR_ST}")
        g(f"v_lshlrev_b32 v{t0}, 4, v0")
        g.vmem(f"buffer_load_dwordx4 v{t0}, s[{S_WS}:{S_WS+3}], s{S_KB} offen sc1 lds", f"{c.key}_0")
        g.vmem(f"buffer_load_dwordx4 v{t0}, s[{S_WS}:{S_WS+3}], s{S_KB} offen offset:1024 sc1 lds", f"{c.key}_0")
    S_R8, S_R28, S_CH = 52, 53, 54
    def chunk_off(c, ch):
        if c.shift or not CROT:
            g(f"s_mov_b32 s{S_CH}, {ch * 4096}")
        elif c.NC == 8:
            g(f"s_add_u32 s{S_CH}, s{S_R8}, {ch}")
            g(f"s_and_b32 s{S_CH}, s{S_CH}, 7")
            g(f"s_lshl_b32 s{S_CH}, s{S_CH}, 12")
        else:
            g(f"s_add_u32 s{S_CH}, s{S_R28}, {ch}")
            g(f"s_sub_u32 s{S_TMP+9}, s{S_CH}, {c.NC}")
            g(f"s_cmp_ge_u32 s{S_CH}, {c.NC}")
            g(f"s_cselect_b32 s{S_CH}, s{S_TMP+9}, s{S_CH}")
            g(f"s_lshl_b32 s{S_CH}, s{S_CH}, 12")
    def partB(c, ch):
        slot = ch % c.NB
        chunk_off(c, ch)
        for tile in range(2):
            g(f"s_add_u32 m0, s{S_DMA}, {slot*c.CB + tile*1024}")
            g("s_nop 0")
            r = vB + tile if not c.shift else vB + 2*(ch >> 1) + tile
            sc = "" if c.key == "p3" else " sc1"
            g.vmem(f"buffer_load_dwordx4 v{r}, s[{S_WS}:{S_WS+3}], s{S_CH} offen{sc} lds", f"{c.key}_{ch}")
    def partA(c, ch):
        if c.key in NOA: return
        slot = ch % c.NB
        chunk_off(c, ch)
        for nt in range(c.NTn):
            g(f"s_add_u32 m0, s{S_DMA}, {slot*c.CB + (2+nt)*1024}")
            g(f"s_add_u32 s{S_KB}, s{S_CH}, {c.tile_list[nt] * c.KS * 1024}")
            g.vmem(f"buffer_load_dwordx4 v{vA}, s[{S_WS}:{S_WS+3}], s{S_KB} offen lds", f"{c.key}_{ch}")
    g(f"s_and_b32 s{S_R8}, s{S_TB}, 7")
    g(f"s_sub_u32 s{S_TMP}, s{S_TB}, 28")
    g(f"s_cmp_ge_u32 s{S_TB}, 28")
    g(f"s_cselect_b32 s{S_R28}, s{S_TMP}, s{S_TB}")
    def free_event(old, lo, hi):
        ev = 0
        for slot in range(min(old.NB, old.NC)):
            a, b = slot*old.CB, (slot+1)*old.CB
            if a < hi and lo < b:
                last = max(cc for cc in range(old.NC) if cc % old.NB == slot)
                ev = max(ev, min(last + 2, old.NC))
        return ev
    c = ph[0]
    setup_A(c); setup_B(c)
    for ch in range(3):
        partB(c, ch); partA(c, ch)
    for p, c in enumerate(ph):
        nxt = ph[p+1] if p + 1 < len(ph) else None
        sched = {}
        if nxt is not None:
            budget = W1_BUDGET[c.key]
            for k in range(nxt.nup):
                ev = free_event(c, k*nxt.CB, (k+1)*nxt.CB)
                if not ROLL.get(c.key, True): ev = c.NC
                if k >= budget: ev = 'S'
                sched.setdefault(ev, []).append(k)
        a_ready = [False]
        def prefetch(ev):
            for k in sched.get(ev, []):
                if not a_ready[0]:
                    setup_A(nxt); a_ready[0] = True
                    if c.key != "p6": part_cs(nxt)
                partA(nxt, k)
        last_refill = max([ch for ch in range(1, c.NC) if ch + c.NB - 1 < c.NC and ch + c.NB - 1 >= c.nup] + [-1])
        if p == 0: last_refill = max(last_refill, 2)
        for ev in list(sched):
            if ev != 'S' and ev <= last_refill + 1:
                sched.setdefault(last_refill + 2 if last_refill + 2 <= c.NC else c.NC, []).extend(sched.pop(ev))
        for ev in sched:
            if ev != 'S': sched[ev].sort()
        pendB = []
        def more(n):
            for _ in range(n):
                if pendB:
                    ch_ = pendB.pop(0)
                    partB(c, ch_)
                    if p == 0: partA(c, ch_)
        if p > 0:
            g("s_barrier")
            g.stamp(c.key + "_Z")
            first = min(c.nup, 4)
            part_st(c)
            for ch in range(first): partB(c, ch)
            pendB = list(range(first, c.nup))
        else:
            pendB = list(range(3, c.nup))
        g.stamp(c.key + "_issued")
        g.wait_vm(f"{c.key}_0")
        g.stamp(c.key + "_c0")
        g("s_barrier")
        more(2)
        prefetch(0)
        for ch in range(c.NC - 1):
            g.wait_vm(f"{c.key}_{ch+1}")
            if c.key in ("p4", "p6") or (c.key == "p7" and ch % 4 == 3): g.stamp(f"{c.key}_c{ch+1}")
            g("s_barrier")
            more(2)
            if ch >= 1 and ch + c.NB - 1 < c.NC and ch + c.NB - 1 >= c.nup:
                partB(c, ch + c.NB - 1); partA(c, ch + c.NB - 1)
            if ch + 1 < c.NC: prefetch(ch + 1) if (ch + 1) != c.NC else None
        if nxt is not None:
            g("s_barrier")
            prefetch(c.NC)
            setup_B(nxt)
            g("s_barrier")
            prefetch('S')
    g.stamp_flush(10 + layer, S_WAVE)
    g("s_endpgm")

CROT = int(os.environ.get('CROT', '0'))
NOA = os.environ.get('NOA', '').split(',')
ROLL = {k: bool(int(os.environ.get("ROLL", "1"))) for k in ("p3", "p4", "p5")}
W1_BUDGET = dict(zip(("p3", "p4", "p5", "p6", "p7", "p1"), [int(x) for x in os.environ.get("W1B", "8,8,2,8,2,0").split(",")]))

def compute(g, name, layer):
    ph = phases(layer)
    V = {}
    n = 1
    def al(nm, cnt, align=1):
        nonlocal n
        n = (n + align - 1) // align * align
        V[nm] = n; n += cnt
    al('t0', 6, 2); al('vRA', 3); al('vRB', 3); al('ad', 1); al('csa', 1); al('mr', 2, 2); al('ab', 2, 2); al('abq', 2, 2); al('gc', 2, 2); al('mv', 4, 2)
    al('x1', 16, 4); al('y', 16, 4)
    al('acc', 64, 4); al('frag', 64, 4); al('st', 16, 4); al('cs', 32, 4); al('pk', 8, 4); al('csv', 2, 2); al('dmy', 2, 2)
    V['_n'] = n
    V['tmp'] = V['frag']
    V['val'] = V['frag'] + 16
    V['res'] = V['frag'] + 32
    V['rowa'] = V['frag'] + 16
    V['rowb'] = V['frag'] + 32
    t0 = V['t0']; acc = V['acc']; pk = V['pk']
    uid = [0]
    def lab(s):
        uid[0] += 1
        return f"L_{name}_{s}{uid[0]}"

    def mode_stores(instrs, tag="st"):
        a, b = lab("sf"), lab("sd")
        g(f"s_cmp_eq_u32 s{S_MODE}, 1")
        g(f"s_cbranch_scc1 {a}")
        for i in instrs: g(i + " sc1")
        g(f"s_branch {b}")
        g(f"{a}:")
        for i in instrs: g(i)
        g(f"{b}:")
        for i in instrs: g.vm.append(tag)

    def cnt_addr(sreg, kind, tb_delta=0):
        g(f"s_add_u32 s{sreg}, s{S_TB}, {kind*32 + tb_delta}")
        g(f"s_lshl_b32 s{sreg}, s{sreg}, 8")
        g(f"s_add_u32 s{sreg}, s{sreg}, s{S_CNT}")

    def sync_next(kind, halo_out=False, halo_in=False):
        skip, slow, done = lab("yk"), lab("ys"), lab("yd")
        g.wait_all_vm()
        g("s_barrier")
        g.stamp(f"S{kind}")
        g(f"s_cmp_lg_u32 s{S_WAVE}, 0")
        g(f"s_cbranch_scc1 {skip}")
        g(f"s_mov_b64 s[{S_EXEC}:{S_EXEC+1}], exec")
        if halo_out:
            g(f"""
            s_bfe_u32 s{S_TMP+2}, s{S_J}, 0x10001
            s_add_u32 s{S_TMP+2}, s{S_TMP+2}, {K_HL}
            s_lshl_b32 s{S_TMP+2}, s{S_TMP+2}, 13
            s_add_u32 s{S_TMP+2}, s{S_TMP+2}, s{S_CO}
            s_mov_b64 exec, 1
            v_mov_b32 v{t0+3}, s{S_TMP+2}
            v_mov_b32 v{t0+1}, 1
            buffer_atomic_add v{t0+1}, v{t0+3}, s[{S_WS}:{S_WS+3}], 0 offen sc1
            """)
        g(f"s_cmp_eq_u32 s{S_MODE}, 1")
        g(f"s_cbranch_scc0 {slow}")
        lp, le = lab("yl"), lab("ye")
        g(f"""
        s_mov_b32 s{S_TMP}, 1
        s_atomic_add s{S_TMP}, s[{S_CB}:{S_CB+1}], {hex(kind*8192)}
        s_mov_b32 s{S_POLL}, 0
        {lp}:
        s_mov_b32 s{S_TMP+1}, 0
        s_atomic_add s{S_TMP+1}, s[{S_CB}:{S_CB+1}], {hex(kind*8192)} glc
        s_add_u32 s{S_POLL}, s{S_POLL}, 1
        s_cmp_gt_u32 s{S_POLL}, {POLL_LIMIT}
        s_cbranch_scc1 {le}
        s_waitcnt lgkmcnt(0)
        s_cmp_ge_u32 s{S_TMP+1}, 8
        s_cbranch_scc0 {lp}
        {le}:
        s_waitcnt lgkmcnt(0)
        s_branch {done}
        {slow}:
        s_add_u32 s{S_TMP}, s{S_CO}, {kind*8192}
        s_mov_b64 exec, 1
        v_mov_b32 v{t0}, s{S_TMP}
        v_mov_b32 v{t0+1}, 1
        buffer_atomic_add v{t0+1}, v{t0}, s[{S_WS}:{S_WS+3}], 0 offen sc1
        v_mov_b32 v{t0+1}, 8
        """)
        vpoll(1)
        g(f"{done}:")
        if halo_in:
            g(f"""
            s_add_u32 s{S_TMP+1}, s{S_CO}, {K_HL*8192 - 256}
            s_add_u32 s{S_TMP+2}, s{S_CO}, {K_HR*8192 + 256}
            s_cmp_eq_u32 s{S_TB}, 0
            s_cselect_b32 s{S_TMP+1}, s{S_CO}, s{S_TMP+1}
            s_cselect_b32 s{S_TMP+3}, 0, 4
            s_cmp_eq_u32 s{S_TB}, 31
            s_cselect_b32 s{S_TMP+2}, s{S_CO}, s{S_TMP+2}
            s_cselect_b32 s{S_TMP+4}, 0, 4
            s_mov_b64 exec, 3
            v_mov_b32 v{t0}, s{S_TMP+1}
            v_mov_b32 v{t0+1}, s{S_TMP+3}
            v_writelane_b32 v{t0}, s{S_TMP+2}, 1
            v_writelane_b32 v{t0+1}, s{S_TMP+4}, 1
            """)
            vpoll(3)
        g(f"s_mov_b64 exec, s[{S_EXEC}:{S_EXEC+1}]")
        g(f"{skip}:")
        g("s_barrier")
        g.stamp(f"Z{kind}")
        g.vm = []; g.lg = []

    def vpoll(mask):
        loop, dn = lab("pl"), lab("pd")
        g(f"""
        s_mov_b32 s{S_POLL}, 0
        {loop}:
        buffer_load_dword v{t0+2}, v{t0}, s[{S_WS}:{S_WS+3}], 0 offen sc1
        s_add_u32 s{S_POLL}, s{S_POLL}, 1
        s_cmp_gt_u32 s{S_POLL}, {POLL_LIMIT}
        s_cbranch_scc1 {dn}
        s_waitcnt vmcnt(0)
        v_cmp_ge_u32 vcc, v{t0+2}, v{t0+1}
        s_nop 1
        s_cmp_eq_u32 vcc_lo, {mask}
        s_cbranch_scc0 {loop}
        {dn}:
        s_waitcnt vmcnt(0)
        """)

    def load_stats():
        st = V['st']
        g(f"""
        s_lshl_b32 s{S_TMP}, s{S_TT}, 12
        s_add_u32 s{S_TMP}, s{S_TMP}, {SCR_ST}
        v_lshlrev_b32 v{t0}, 2, v0
        v_add_u32 v{t0}, s{S_TMP}, v{t0}
        """)
        for p in range(0, 16, 2):
            g.lds(f"ds_read2st64_b32 v[{st+p}:{st+p+1}], v{t0} offset0:{p} offset1:{p+1}", "st")
    def reduce_stats(vm, vvar):
        st = V['st']
        for k in (8, 4, 2, 1):
            for i in range(k):
                g(f"v_add_f32 v{st+i}, v{st+i}, v{st+i+k}")
        g(f"v_mov_b32 v{st+1}, v{st}")
        g("s_nop 1")
        g(f"v_permlane32_swap_b32 v{st}, v{st+1}")
        g("s_nop 1")
        g(f"v_mul_f32 v{vm}, {fl(1.0/D)}, v{st}")
        g(f"v_mul_f32 v{vvar}, {fl(1.0/D)}, v{st+1}")
        g(f"v_fma_f32 v{vvar}, -v{vm}, v{vm}, v{vvar}")
        g(f"v_max_f32 v{vvar}, 0, v{vvar}")
    def cs_addr(tile_sreg_bytes):
        g(f"v_lshrrev_b32 v{t0+1}, 5, v0")
        g(f"v_lshlrev_b32 v{t0+1}, 4, v{t0+1}")
        g(f"v_add_u32 v{V['csa']}, s{tile_sreg_bytes}, v{t0+1}")
    def load_cs(dst, tag, imm=0):
        for gq in range(4):
            g.lds(f"ds_read_b128 v[{dst+4*gq}:{dst+4*gq+3}], v{V['csa']} offset:{imm + 32*gq}", tag)
    def f_soff(sreg, ws_off, nslab_t):
        g(f"""
        s_mul_i32 s{sreg}, s{S_T}, {nslab_t*1024}
        s_lshl_b32 s{sreg+1}, s{S_SLAB}, 10
        s_add_u32 s{sreg}, s{sreg}, s{sreg+1}
        s_add_u32 s{sreg}, s{sreg}, {ws_off}
        """)
    def pack(vals):
        for i in range(8):
            g(f"v_cvt_pk_bf16_f32 v{pk+i}, v{vals+2*i}, v{vals+2*i+1}")
    def store_F(sreg, imm0=0):
        ad = V['ad']
        mode_stores([f"buffer_store_dwordx4 v[{pk}:{pk+3}], v{ad}, s[{S_WS}:{S_WS+3}], s{sreg} offen offset:{imm0}",
                     f"buffer_store_dwordx4 v[{pk+4}:{pk+7}], v{ad}, s[{S_WS}:{S_WS+3}], s{sreg} offen offset:{imm0+1024}"])
    def stats_partial(vals, ws_off):
        a, b = t0, t0 + 2
        g(f"v_pk_add_f32 v[{a}:{a+1}], v[{vals}:{vals+1}], v[{vals+2}:{vals+3}]")
        g(f"v_pk_mul_f32 v[{b}:{b+1}], v[{vals}:{vals+1}], v[{vals}:{vals+1}]")
        g(f"v_pk_fma_f32 v[{b}:{b+1}], v[{vals+2}:{vals+3}], v[{vals+2}:{vals+3}], v[{b}:{b+1}]")
        for i in range(4, 16, 2):
            g(f"v_pk_add_f32 v[{a}:{a+1}], v[{a}:{a+1}], v[{vals+i}:{vals+i+1}]")
            g(f"v_pk_fma_f32 v[{b}:{b+1}], v[{vals+i}:{vals+i+1}], v[{vals+i}:{vals+i+1}], v[{b}:{b+1}]")
        g(f"v_add_f32 v{a}, v{a}, v{a+1}")
        g(f"v_add_f32 v{a+1}, v{b}, v{b+1}")
        g("s_nop 1")
        g(f"v_permlane32_swap_b32 v{a}, v{a+1}")
        g("s_nop 1")
        g(f"v_add_f32 v{a}, v{a}, v{a+1}")
        g(f"""
        s_lshl_b32 s{S_TMP+4}, s{S_T}, 12
        s_lshl_b32 s{S_TMP+5}, s{S_PART}, 8
        s_add_u32 s{S_TMP+4}, s{S_TMP+4}, s{S_TMP+5}
        s_add_u32 s{S_TMP+4}, s{S_TMP+4}, {ws_off}
        v_lshlrev_b32 v{b}, 2, v0
        """)
        mode_stores([f"buffer_store_dword v{a}, v{b}, s[{S_WS}:{S_WS+3}], s{S_TMP+4} offen"])
    def scale_cs(cs, va):
        for i in range(0, 16, 2):
            g(f"v_pk_mul_f32 v[{cs+i}:{cs+i+1}], v[{cs+i}:{cs+i+1}], v[{va}:{va+1}] op_sel:[0,1] op_sel_hi:[1,1]")
    def affine(a, cs, va):
        for i in range(0, 16, 2):
            g(f"v_pk_fma_f32 v[{a+i}:{a+i+1}], v[{a+i}:{a+i+1}], v[{va}:{va+1}], v[{cs+i}:{cs+i+1}] op_sel:[0,0,0] op_sel_hi:[1,0,1]")
    def part512():
        g(f"s_lshl_b32 s{S_PART}, s{S_J}, 1")
        g(f"s_add_u32 s{S_PART}, s{S_PART}, s{S_NG}")
        g(f"s_lshl_b32 s{S_SLAB}, s{S_PART}, 1")

    def kloop(c, last, after_y0=None, hooks={}):
        KS, NB, CB, SB, NW, LA = c.KS, c.NB, c.CB, c.SB, c.NW, c.LA
        nset = LA + 1; FS = 4*NW + 4
        assert nset * FS <= 64
        fr = V['frag']; vRA, vRB = V['vRA'], V['vRB']
        nbase = (NB * CB + 65535) // 65536
        g(f"""
        s_mul_i32 s{S_TMP}, s{S_NG}, {c.ng_stride * 1024}
        s_add_u32 s{S_TMP}, s{S_TMP}, 2048
        v_lshlrev_b32 v{vRB}, 4, v0
        v_add_u32 v{vRA}, s{S_TMP}, v{vRB}
        s_lshl_b32 s{S_TMP}, s{S_TT}, 10
        v_add_u32 v{vRB}, s{S_TMP}, v{vRB}
        """)
        for k in range(1, nbase):
            g(f"v_add_u32 v{vRA+k}, {65536*k}, v{vRA}")
            g(f"v_add_u32 v{vRB+k}, {65536*k}, v{vRB}")
        def reads(q):
            st = fr + (q % nset) * FS
            ch, i = divmod(q, 4)
            base = (ch % NB) * CB + i * SB
            kb, imm = divmod(base, 65536)
            g.lds(f"ds_read_b128 v[{st}:{st+3}], v{vRB+kb} offset:{imm}", f"r{q}")
            for w in range(NW):
                if c.key in NOA: break
                ka, imm = divmod(base + w * c.tile_stride * 1024, 65536)
                d = st + 4 + 4*w
                g.lds(f"ds_read_b128 v[{d}:{d+3}], v{vRA+ka} offset:{imm}", f"r{q}")
        def mfmas(q):
            st = fr + (q % nset) * FS
            for w in range(NW):
                a = acc + 16*w
                cin = "0" if q == 0 else f"v[{a}:{a+15}]"
                A = f"v[{st+4+4*w}:{st+7+4*w}]"; B = f"v[{st}:{st+3}]"
                if c.swapped[w]: A, B = B, A
                g(f"v_mfma_f32_32x32x16_bf16 v[{a}:{a+15}], {A}, {B}, {cin}")
        g.lg = []
        g("s_barrier")
        g.stamp(c.key + "_y0")
        for q in range(min(LA, KS)): reads(q)
        if after_y0: after_y0()
        for ch in range(c.NC):
            if ch + 1 < c.NC: g("s_barrier")
            if ch in hooks: hooks[ch]()
            for i in range(4):
                q = 4*ch + i
                if q + LA < KS: reads(q + LA)
                g.wait_lg(f"r{q}")
                mfmas(q)
        g.stamp(c.key + "_loop")

    c = ph[0]
    part512()
    g(f"v_lshlrev_b32 v{V['ad']}, 4, v0")
    XS, OB = bufs(layer)
    res = V['st']
    if layer == 0:
        g(f"""
        s_lshl_b32 s{S_TMP+2}, s{S_T}, 15
        s_lshl_b32 s{S_TMP+3}, s{S_PART}, 6
        s_add_u32 s{S_TMP+2}, s{S_TMP+2}, s{S_TMP+3}
        v_and_b32 v{t0}, 31, v0
        v_lshlrev_b32 v{t0}, 10, v{t0}
        v_lshrrev_b32 v{t0+1}, 5, v0
        v_lshl_add_u32 v{t0}, v{t0+1}, 4, v{t0}
        """)
        g.vmem(f"buffer_load_dwordx4 v[{res}:{res+3}], v{t0}, s[{S_OUT}:{S_OUT+3}], s{S_TMP+2} offen", "res")
        g.vmem(f"buffer_load_dwordx4 v[{res+4}:{res+7}], v{t0}, s[{S_OUT}:{S_OUT+3}], s{S_TMP+2} offen offset:32", "res")
    else:
        f_soff(S_TMP+2, XS, 32)
        g.vmem(f"buffer_load_dwordx4 v[{res}:{res+3}], v{V['ad']}, s[{S_WS}:{S_WS+3}], s{S_TMP+2} offen", "res")
        g.vmem(f"buffer_load_dwordx4 v[{res+4}:{res+7}], v{V['ad']}, s[{S_WS}:{S_WS+3}], s{S_TMP+2} offen offset:1024", "res")
    cp = lab("cp")
    g(f"s_cmp_lg_u32 s{S_WAVE}, 3")
    g(f"s_cbranch_scc1 {cp}")
    g(f"s_lshr_b32 s{S_TMP+5}, s2, 3")
    code_prefetch(g, f"{name}", V['dmy'], S_TMP+2, S_TMP+5)
    g(f"{cp}:")
    hs = lab("hs")
    g(f"""
    s_cmp_lg_u32 s{S_WAVE}, 0
    s_cbranch_scc1 {hs}
    s_getreg_b32 s{S_TMP+4}, hwreg(HW_REG_XCC_ID, 0, 3)
    s_lshl_b32 s{S_TMP+4}, s{S_TMP+4}, 2
    s_lshl_b32 s{S_TMP+4}, 1, s{S_TMP+4}
    """)
    g(f"""
    s_mov_b64 s[{S_EXEC}:{S_EXEC+1}], exec
    s_mov_b64 exec, 1
    v_mov_b32 v{t0}, s{S_CO}
    v_mov_b32 v{t0+1}, s{S_TMP+4}
    buffer_atomic_add v{t0+1}, v{t0}, s[{S_WS}:{S_WS+3}], 0 offen sc1
    s_mov_b64 exec, s[{S_EXEC}:{S_EXEC+1}]
    {hs}:
    """)
    cv = V['csv']; x1 = V['x1']
    def early_census():
        g(f"v_mov_b32 v{cv+1}, s{S_CO}")
        g.vmem(f"buffer_load_dword v{cv}, v{cv+1}, s[{S_WS}:{S_WS+3}], 0 offen sc1", "census")
    def census_check():
        lp, dn, chk = lab("hl"), lab("hd"), lab("hc")
        g.wait_vm(["census", "res"])
        g(f"""
        s_getreg_b32 s{S_TMP+4}, hwreg(HW_REG_XCC_ID, 0, 3)
        s_lshl_b32 s{S_TMP+4}, s{S_TMP+4}, 2
        s_lshl_b32 s{S_TMP+4}, 8, s{S_TMP+4}
        s_mov_b32 s{S_POLL}, 0
        s_branch {chk}
        {lp}:
        buffer_load_dword v{cv}, v{cv+1}, s[{S_WS}:{S_WS+3}], 0 offen sc1
        s_waitcnt vmcnt(0)
        {chk}:
        v_readfirstlane_b32 s{S_TMP+6}, v{cv}
        s_add_u32 s{S_POLL}, s{S_POLL}, 1
        s_cmp_gt_u32 s{S_POLL}, {POLL_LIMIT}
        s_cbranch_scc1 {dn}
        s_and_b32 s{S_TMP+7}, s{S_TMP+6}, 0x0f0f0f0f
        s_lshr_b32 s{S_TMP+8}, s{S_TMP+6}, 4
        s_and_b32 s{S_TMP+8}, s{S_TMP+8}, 0x0f0f0f0f
        s_add_u32 s{S_TMP+7}, s{S_TMP+7}, s{S_TMP+8}
        s_mul_i32 s{S_TMP+7}, s{S_TMP+7}, 0x01010101
        s_lshr_b32 s{S_TMP+7}, s{S_TMP+7}, 24
        s_cmp_lt_u32 s{S_TMP+7}, 8
        s_cbranch_scc1 {lp}
        {dn}:
        s_cmp_eq_u32 s{S_TMP+6}, s{S_TMP+4}
        s_cselect_b32 s{S_MODE}, 1, 0
        """)
        if FORCE_SLOW:
            g(f"s_mov_b32 s{S_MODE}, 0")
        if layer == 0:
            for sl in range(2):
                b = res + 4*sl
                g(f"v_permlane32_swap_b32 v{b}, v{b+2}")
                g(f"v_permlane32_swap_b32 v{b+1}, v{b+3}")
            g("s_nop 1")
        unpack8(g, x1, res)
    kloop(c, False, hooks={1: early_census, 6: census_check})
    g("s_barrier                                    ; X")
    if STAMPS:
        g.stamps.append("MODE"); g(f"v_writelane_b32 v250, s{S_MODE}, {len(g.stamps)-1}")
    f_soff(S_TMP+2, XS, 32)
    g("s_nop 7")
    for i in range(0, 16, 2):
        g(f"v_pk_add_f32 v[{x1+i}:{x1+i+1}], v[{x1+i}:{x1+i+1}], v[{acc+i}:{acc+i+1}]")
    pack(x1)
    store_F(S_TMP+2)
    stats_partial(x1, WS_SX1)
    sync_next(K_P3)

    c = ph[1]
    ab, mv, mr = V['ab'], V['mv'], V['mr']
    def p4_stats():
        g.wait_all_lg()
        load_stats()
        g(f"s_lshl_b32 s{S_TMP+3}, s{S_NG}, 7")
        g(f"s_add_u32 s{S_TMP+3}, s{S_TMP+3}, {SCR_CS}")
        cs_addr(S_TMP+3)
        load_cs(V['cs'], "cs")
        g.wait_all_lg()
        reduce_stats(mr, mv+1)
        rsq_eps(g, mr+1, mv+1)
        g(f"v_mul_f32 v{mv+3}, v{mr+1}, v{mr+1}")
        g(f"v_mul_f32 v{mv+3}, v{mv+3}, v{mv+1}")
        rsq_eps(g, mv+3, mv+3)
        g(f"v_mul_f32 v{ab}, v{mr+1}, v{mv+3}")
        g(f"v_mul_f32_e64 v{ab+1}, -v{mr}, v{ab}")
        g(f"v_mov_b32 v{V['gc']}, {fl(GELU_C0)}")
        g(f"v_mov_b32 v{V['gc']+1}, {fl(GELU_C1)}")
        scale_cs(V['cs'], ab)
    kloop(c, False, after_y0=p4_stats)
    g("s_barrier")
    f_soff(S_TMP+2, OB, 32)
    g("s_nop 7")
    affine(acc, V['cs'], ab)
    gelu16(g, V, acc, V['tmp'])
    pack(acc)
    nh = lab("nh")
    g(f"""
    s_bfe_u32 s{S_TMP+4}, s{S_J}, 0x10001
    s_xor_b32 s{S_TMP+5}, s{S_TMP+4}, 1
    s_cmp_lg_u32 s{S_TMP+5}, s{S_TT}
    s_cbranch_scc1 {nh}
    s_mul_i32 s{S_TMP+5}, s{S_TMP+5}, 30
    v_and_b32 v{t0}, 31, v0
    v_subrev_u32 v{t0}, s{S_TMP+5}, v{t0}
    v_cmp_gt_u32 vcc, 2, v{t0}
    v_lshlrev_b32 v{t0}, 4, v{t0}
    v_lshrrev_b32 v{t0+1}, 5, v0
    v_lshl_add_u32 v{t0}, v{t0+1}, 9, v{t0}       ; h*512 + idx*16
    s_lshl_b32 s{S_TMP+6}, s{S_TB}, 15
    s_lshl_b32 s{S_TMP+7}, s{S_SLAB}, 10
    s_add_u32 s{S_TMP+6}, s{S_TMP+6}, s{S_TMP+7}
    s_add_u32 s{S_TMP+6}, s{S_TMP+6}, {WS_HALO}
    s_and_saveexec_b64 s[{S_EXEC}:{S_EXEC+1}], vcc
    buffer_store_dwordx4 v[{pk}:{pk+3}], v{t0}, s[{S_WS}:{S_WS+3}], s{S_TMP+6} offen sc1
    buffer_store_dwordx4 v[{pk+4}:{pk+7}], v{t0}, s[{S_WS}:{S_WS+3}], s{S_TMP+6} offen offset:1024 sc1
    s_mov_b64 exec, s[{S_EXEC}:{S_EXEC+1}]
    {nh}:
    """)
    store_F(S_TMP+2)
    sync_next(K_P4, halo_out=True, halo_in=True)

    c = ph[2]
    y = V['y']
    g(f"v_mov_b32 v{ab}, v{mr+1}")
    g(f"v_mul_f32_e64 v{ab+1}, -v{mr}, v{mr+1}")
    for i in range(0, 16, 2):
        g(f"v_pk_fma_f32 v[{y+i}:{y+i+1}], v[{x1+i}:{x1+i+1}], v[{ab}:{ab+1}], v[{ab}:{ab+1}] op_sel:[0,0,1] op_sel_hi:[1,0,1]")
    kloop(c, False)
    g("s_barrier")
    f_soff(S_TMP+2, XS, 32)
    g("s_nop 7")
    for i in range(0, 16, 2):
        g(f"v_pk_add_f32 v[{y+i}:{y+i+1}], v[{y+i}:{y+i+1}], v[{acc+i}:{acc+i+1}]")
    pack(y)
    store_F(S_TMP+2)
    stats_partial(y, WS_SY)
    sync_next(K_P5)

    c = ph[3]
    g(f"s_mul_i32 s{S_PART}, s{S_J}, 7")
    g(f"s_mul_i32 s{S_TMP}, s{S_NG}, 3")
    g(f"s_add_u32 s{S_PART}, s{S_PART}, s{S_TMP}")
    g(f"s_lshl_b32 s{S_SLAB}, s{S_PART}, 1")
    cs = V['cs']
    def p6_stats():
        g.wait_all_lg()
        load_stats()
        g(f"s_mul_i32 s{S_TMP+3}, s{S_NG}, {3*128}")
        g(f"s_add_u32 s{S_TMP+3}, s{S_TMP+3}, {SCR_CS}")
        cs_addr(S_TMP+3)
        g.wait_all_lg()
        load_cs(cs, "cs0", 0)
        load_cs(cs+16, "cs1", 128)
        g.wait_all_lg()
        reduce_stats(mv, mv+1)
        rsq_eps(g, ab, mv+1)
        g(f"v_mul_f32_e64 v{ab+1}, -v{mv}, v{ab}")
        scale_cs(cs, ab); scale_cs(cs+16, ab)
    kloop(c, False, after_y0=p6_stats)
    g("s_barrier")
    f_soff(S_TMP+2, WS_G, 112)
    g("s_nop 7")
    for w in range(4):
        if w >= 2:
            g.wait_lg(f"cs{w}")
            scale_cs(cs+16*(w & 1), ab)
        affine(acc+16*w, cs+16*(w & 1), ab)
        if w + 2 < 4:
            load_cs(cs+16*(w & 1), f"cs{w+2}", 128*(w+2))
        gelu16(g, V, acc+16*w, V['tmp'])
        pack(acc+16*w)
        store_F(S_TMP+2)
        if w < 3:
            g(f"s_add_u32 s{S_TMP+2}, s{S_TMP+2}, 2048")
    sync_next(K_P6)

    c = ph[4]
    part512()
    kloop(c, layer == 1)
    if layer == 0:
        g("s_barrier")
    g("s_nop 15")
    for i in range(0, 16, 2):
        g(f"v_pk_add_f32 v[{y+i}:{y+i+1}], v[{y+i}:{y+i+1}], v[{acc+i}:{acc+i+1}]")
    for i in range(0, 16, 2):
        g(f"v_pk_add_f32 v[{x1+i}:{x1+i+1}], v[{x1+i}:{x1+i+1}], v[{y+i}:{y+i+1}]")
    if layer == 1:
        g(f"""
        s_lshl_b32 s{S_TMP}, s{S_T}, 15
        s_lshl_b32 s{S_TMP+1}, s{S_PART}, 6
        s_add_u32 s{S_TMP}, s{S_TMP}, s{S_TMP+1}
        v_and_b32 v{t0}, 31, v0
        v_lshlrev_b32 v{t0}, 10, v{t0}
        v_lshrrev_b32 v{t0+1}, 5, v0
        v_lshl_add_u32 v{t0}, v{t0+1}, 4, v{t0}
        """)
        pack(x1)
        g("s_nop 1")
        for sl in range(2):
            b = pk + 4*sl
            g(f"v_permlane32_swap_b32 v{b}, v{b+2}")
            g(f"v_permlane32_swap_b32 v{b+1}, v{b+3}")
        g("s_nop 1")
        for sl in range(2):
            b = pk + 4*sl
            g.vmem(f"buffer_store_dwordx4 v[{b}:{b+3}], v{t0}, s[{S_OUT}:{S_OUT+3}], s{S_TMP} offen offset:{32*sl}", "st")
        g.stamp("p7_done")
        return V
    f_soff(S_TMP+2, WS_OA, 32)
    pack(x1)
    store_F(S_TMP+2)
    stats_partial(x1, WS_SXB)
    sync_next(K_P7)

    c = ph[5]
    def p1_loads():
        g.wait_all_lg()
        load_stats()
        g(f"s_lshl_b32 s{S_TMP+3}, s{S_NG}, 7")
        g(f"s_add_u32 s{S_TMP+3}, s{S_TMP+3}, {SCR_CS}")
        cs_addr(S_TMP+3)
        g(f"v_and_b32 v{t0+2}, 31, v0")
        g(f"v_lshlrev_b32 v{t0+2}, 2, v{t0+2}")
        g(f"v_add_u32 v{t0+2}, s{S_TMP+3}, v{t0+2}")
        g.wait_all_lg()
        load_cs(cs, "cs", 0)
        load_cs(cs+16, "cs", 256)
        g.lds(f"ds_read_b32 v{V['csv']}, v{t0+2} offset:512", "cs")
        g.wait_all_lg()
    kloop(c, True, after_y0=p1_loads)
    reduce_stats(mv, mv+1)
    qkv_epilogue(g, V, t0, 1)
    g.stamp("p1_done")
    return V

def qkv_epilogue(g, V, t0, layer_next):
    acc, ab, abq, mv, pk, cs = V['acc'], V['ab'], V['abq'], V['mv'], V['pk'], V['cs']
    rsq_eps(g, ab, mv+1)
    g(f"v_mul_f32_e64 v{ab+1}, -v{mv}, v{ab}")
    g(f"v_mul_f32 v{abq}, {fl(QSCALE)}, v{ab}")
    g(f"v_mul_f32 v{abq+1}, {fl(QSCALE)}, v{ab+1}")
    g(f"""
    s_lshl_b32 s{S_TMP}, s{S_WAVE}, 8
    s_add_u32 s{S_TMP}, s{S_TMP}, {SCR}
    v_and_b32 v{t0}, 31, v0
    v_lshlrev_b32 v{t0}, 2, v{t0}
    v_add_u32 v{t0}, s{S_TMP}, v{t0}
    ds_write_b32 v{t0}, v{ab}
    ds_write_b32 v{t0}, v{ab+1} offset:128
    v_lshrrev_b32 v{t0+1}, 5, v0
    v_lshlrev_b32 v{t0+1}, 4, v{t0+1}
    v_add_u32 v{t0+1}, s{S_TMP}, v{t0+1}
    s_waitcnt lgkmcnt(0)
    """)
    for gq in range(4):
        g(f"ds_read_b128 v[{V['rowa']+4*gq}:{V['rowa']+4*gq+3}], v{t0+1} offset:{32*gq}")
        g(f"ds_read_b128 v[{V['rowb']+4*gq}:{V['rowb']+4*gq+3}], v{t0+1} offset:{128+32*gq}")
    g(f"""
    s_lshl_b32 s{S_TMP}, s{S_PART}, 17
    s_lshl_b32 s{S_TMP+1}, s{S_T}, 10
    s_add_u32 s{S_TMP+2}, s{S_TMP}, s{S_TMP+1}
    v_lshlrev_b32 v{V['ad']}, 4, v0
    """)
    def store_heads(vals, ws_off):
        for i in range(8):
            g(f"v_cvt_pk_bf16_f32 v{pk+i}, v{vals+2*i}, v{vals+2*i+1}")
        g(f"s_add_u32 s{S_TMP+4}, s{S_TMP+2}, {ws_off}")
        g(f"s_add_u32 s{S_TMP+5}, s{S_TMP+2}, {ws_off + 65536}")
        g.vmem(f"buffer_store_dwordx4 v[{pk}:{pk+3}], v{V['ad']}, s[{S_WS}:{S_WS+3}], s{S_TMP+4} offen", "st")
        g.vmem(f"buffer_store_dwordx4 v[{pk+4}:{pk+7}], v{V['ad']}, s[{S_WS}:{S_WS+3}], s{S_TMP+5} offen", "st")
        g("s_nop 1")
    ln_affine(g, acc, cs, abq+1, abq)
    store_heads(acc, WS_Q)
    k = acc + 16
    ln_affine(g, k, cs+16, ab+1, ab)
    store_heads(k, WS_K)
    g(f"v_pk_mul_f32 v[{t0}:{t0+1}], v[{k}:{k+1}], v[{k}:{k+1}]")
    g(f"v_pk_mul_f32 v[{t0+2}:{t0+3}], v[{k+8}:{k+9}], v[{k+8}:{k+9}]")
    for i in range(2, 8, 2):
        g(f"v_pk_fma_f32 v[{t0}:{t0+1}], v[{k+i}:{k+i+1}], v[{k+i}:{k+i+1}], v[{t0}:{t0+1}]")
        g(f"v_pk_fma_f32 v[{t0+2}:{t0+3}], v[{k+8+i}:{k+8+i+1}], v[{k+8+i}:{k+8+i+1}], v[{t0+2}:{t0+3}]")
    g(f"v_add_f32 v{t0}, v{t0}, v{t0+1}")
    g(f"v_add_f32 v{t0+1}, v{t0+2}, v{t0+3}")
    g("s_nop 1")
    g(f"v_permlane32_swap_b32 v{t0}, v{t0+1}")
    g("s_nop 1")
    g(f"v_add_f32 v{t0}, v{t0}, v{t0+1}")
    for ror in (8, 4, 2, 1):
        g("s_nop 1")
        g(f"v_max_f32_dpp v{t0}, v{t0}, v{t0} row_ror:{ror} row_mask:0xf bank_mask:0xf")
    g(f"v_mov_b32 v{t0+1}, v{t0}")
    g("s_nop 1")
    g(f"v_permlane16_swap_b32 v{t0}, v{t0+1}")
    g("s_nop 1")
    g(f"v_max_f32 v{t0}, v{t0}, v{t0+1}")
    g(f"""
    s_lshl_b32 s{S_TMP}, s{S_PART}, 9
    s_lshl_b32 s{S_TMP+1}, s{S_T}, 2
    s_add_u32 s{S_TMP}, s{S_TMP}, s{S_TMP+1}
    s_add_u32 s{S_TMP}, s{S_TMP}, {WS_KN + 8192*layer_next}
    v_lshrrev_b32 v{t0+1}, 5, v0
    v_lshlrev_b32 v{t0+1}, 8, v{t0+1}
    s_mov_b64 s[{S_EXEC}:{S_EXEC+1}], exec
    s_mov_b32 exec_lo, 1
    s_mov_b32 exec_hi, 1
    buffer_store_dword v{t0}, v{t0+1}, s[{S_WS}:{S_WS+3}], s{S_TMP} offen
    s_mov_b64 exec, s[{S_EXEC}:{S_EXEC+1}]
    """)
    v = acc + 32
    csv = V['csv']
    g("s_waitcnt lgkmcnt(0)")
    for i in range(0, 16, 2):
        g(f"v_pk_mul_f32 v[{V['rowb']+i}:{V['rowb']+i+1}], v[{V['rowb']+i}:{V['rowb']+i+1}], v[{csv}:{csv+1}] op_sel:[0,0] op_sel_hi:[1,0]")
    for i in range(0, 16, 2):
        g(f"v_pk_fma_f32 v[{v+i}:{v+i+1}], v[{v+i}:{v+i+1}], v[{V['rowa']+i}:{V['rowa']+i+1}], v[{V['rowb']+i}:{V['rowb']+i+1}]")
    for i in range(8):
        g(f"v_cvt_pk_bf16_f32 v{pk+i}, v{v+2*i}, v{v+2*i+1}")
    g(f"""
    v_bfe_u32 v{t0}, v0, 4, 1
    v_lshlrev_b32 v{t0}, 16, v{t0}
    v_lshrrev_b32 v{t0+1}, 5, v0
    v_lshl_add_u32 v{t0}, v{t0+1}, 8, v{t0}
    v_and_b32 v{t0+1}, 15, v0
    v_lshl_add_u32 v{t0}, v{t0+1}, 4, v{t0}
    s_add_u32 s{S_TMP}, s{S_TMP+2}, {WS_V}
    """)
    g.vmem(f"buffer_store_dwordx4 v[{pk}:{pk+3}], v{t0}, s[{S_WS}:{S_WS+3}], s{S_TMP} offen", "st")
    g.vmem(f"buffer_store_dwordx4 v[{pk+4}:{pk+7}], v{t0}, s[{S_WS}:{S_WS+3}], s{S_TMP} offen offset:512", "st")

FORCE_SLOW = bool(int(os.environ.get("FORCE_SLOW", "0")))

def chain_kernel(name, layer):
    g = Gen()
    g(kernel_header(name))
    g.stamp("start")
    g(f"""
    s_cmp_ge_u32 s2, 256
    s_cbranch_scc1 L_{name}_end
    s_load_dwordx2 s[6:7], s[0:1], {KA_WS}
    s_load_dwordx2 s[4:5], s[0:1], {KA_X if layer == 0 else KA_OUT}
    v_lshrrev_b32 v1, 6, v0
    v_and_b32 v0, 63, v0
    s_and_b32 s{S_TMP}, s2, 7
    s_lshr_b32 s{S_TMP+1}, s2, 3
    v_readfirstlane_b32 s{S_WAVE}, v1
    s_and_b32 s{S_J}, s{S_TMP+1}, 7
    s_lshr_b32 s{S_TMP+1}, s{S_TMP+1}, 3
    s_lshl_b32 s{S_TB}, s{S_TMP}, 2
    s_add_u32 s{S_TB}, s{S_TB}, s{S_TMP+1}
    s_and_b32 s{S_TT}, s{S_WAVE}, 1
    s_bfe_u32 s{S_NG}, s{S_WAVE}, 0x10001
    s_and_b32 s{S_LW}, s{S_WAVE}, 3
    s_lshl_b32 s{S_T}, s{S_TB}, 1
    s_add_u32 s{S_T}, s{S_T}, s{S_TT}
    s_lshl_b32 s{S_CO}, s{S_TB}, 8
    s_add_u32 s{S_CO}, s{S_CO}, {WS_CNT + layer*65536}
    s_mov_b32 s{S_MODE}, 0
    s_waitcnt lgkmcnt(0)
    s_add_u32 s{S_CB}, s6, s{S_CO}
    s_addc_u32 s{S_CB+1}, s7, 0
    """)
    srd(g, S_WS, 6, 7, WS_USED)
    srd(g, S_OUT, 4, 5, S * D * 2)
    g(f"""
    s_cmp_ge_u32 s{S_WAVE}, 4
    s_cbranch_scc1 L_{name}_ld
    """)
    gc = Gen(); gc.stamps = g.stamps
    V = compute(gc, name, layer)
    g.l += gc.l
    if STAMPS:
        g("s_waitcnt vmcnt(0)")
        g.stamp("end")
    g.stamp_flush(8 + layer, S_WAVE)
    g("s_endpgm")
    g(f"L_{name}_ld:")
    gl = Gen()
    loader(gl, name, layer)
    g.l += gl.l
    g(f"L_{name}_end:")
    g("s_endpgm")
    return g.text() + kernel_desc(name, max(V['_n'], 32), 64), dict(name=name, grid=256, block=512, lds=LDS_BYTES)
```

```python
import struct, math

S = 2048; D = 512; H = 32; DH = 16; F = 1792
NT = S // 32

def f2u(x):
    return struct.unpack("<I", struct.pack("<f", x))[0]
def fl(x):
    return hex(f2u(x))

KA_X, KA_WQKV, KA_WO, KA_BX, KA_W1, KA_W2, KA_W3, KA_W4, KA_OUT, KA_DBG, KA_WS = [8*i for i in range(11)]

MB = 1 << 20
WS_X   = 21 * MB
WS_OA  = 2 * MB
WS_OB  = 4 * MB
WS_Q   = 6 * MB
WS_K   = 8 * MB
WS_V   = 10 * MB
WS_G   = 12 * MB
WS_SX  = 19 * MB
WS_SX1 = WS_SX + 256 * 1024
WS_SY  = WS_SX + 512 * 1024
WS_SXB = WS_SX + 768 * 1024
WS_HALO = 20 * MB
WS_TOUCH0, WS_TOUCH1 = WS_G, 23 * MB
WS_KN  = 0 * MB
WS_CSQ = WS_KN + 32 * 1024
WS_CS1 = WS_CSQ + 8192
WS_CS3 = WS_CS1 + 4096
WS_CNT = 1 * MB
WS_WQ = 24 * MB
WS_WO = WS_WQ + 48 * 32768
WS_W1 = WS_WO + 16 * 32768
WS_W2 = WS_W1 + 16 * 32768
WS_W3 = WS_W2 + 16 * 32768
WS_W4 = WS_W3 + 56 * 32768
WS_USED = 32 * MB
WS_O = WS_OA; WS_X1 = 33 * MB; WS_H = 35 * MB; WS_Y = 37 * MB; WS_MR = 39 * MB; WS_XB = WS_OA

import os
STAMPS = bool(int(os.environ.get("STAMPS", "0")))
STAMP_LABELS = {}
STAMP_MINV = {'attn0_kernel': 128, 'attn1_kernel': 128}
WS_STAMP = 48 * MB
if STAMPS:
    WS_USED = 64 * MB

class Gen:
    def __init__(self):
        self.l = []
        self.vm = []
        self.lg = []
        self.stamps = []
    def __call__(self, s=""):
        for x in s.split("\n"):
            x = x.strip()
            if x:
                self.l.append(("" if x.endswith(":") or x.startswith(".") else "    ") + x)
    def text(self):
        return "\n".join(self.l) + "\n"
    def vmem(self, instr, tag=None):
        self(instr); self.vm.append(tag)
    def lds(self, instr, tag=None):
        self(instr); self.lg.append(tag)
    def _need(self, lst, tags):
        if not isinstance(tags, (list, tuple, set)): tags = [tags]
        idx = [i for i, t in enumerate(lst) if t in tags]
        if not idx: return None
        return len(lst) - 1 - max(idx)
    def wait_vm(self, tags, extra=""):
        n = self._need(self.vm, tags)
        if n is None:
            if extra: self(extra)
            return
        if n <= 63:
            self(f"s_waitcnt vmcnt({n})")
        self.vm = self.vm[len(self.vm) - n:] if n > 0 else []
    def wait_lg(self, tags):
        n = self._need(self.lg, tags)
        if n is None: return
        assert n <= 15, f"lgkmcnt {n} too large"
        self(f"s_waitcnt lgkmcnt({n})")
        self.lg = self.lg[len(self.lg) - n:] if n > 0 else []
    def wait_all_vm(self):
        self("s_waitcnt vmcnt(0)"); self.vm = []
    def wait_all_lg(self):
        self("s_waitcnt lgkmcnt(0)"); self.lg = []
    stamp_vgpr = 250
    def stamp(self, label=""):
        if not STAMPS: return
        i = len(self.stamps)
        assert i < 64
        self.stamps.append(label)
        self("s_memtime s[62:63]")
        self("s_waitcnt lgkmcnt(0)")
        self(f"v_writelane_b32 v{self.stamp_vgpr}, s62, {i}")
    def stamp_flush(self, kidx, wave_sreg):
        if not STAMPS: return
        self(f"s_lshl_b32 s62, s2, 4")
        self(f"s_add_u32 s62, s62, s{wave_sreg}")
        self(f"s_lshl_b32 s62, s62, 8")
        self(f"s_add_u32 s62, s62, {WS_STAMP + kidx*MB}")
        self("s_mov_b64 exec, -1")
        self("v_lshlrev_b32 v1, 2, v0")
        self(f"buffer_store_dword v{self.stamp_vgpr}, v1, s[12:15], s62 offen")
        STAMP_LABELS[kidx] = list(self.stamps)
    def nop(self, n):
        while n > 0:
            k = min(n, 16)
            self(f"s_nop {k-1}")
            n -= k

def vr(a, n=1):
    return f"v{a}" if n == 1 else f"v[{a}:{a+n-1}]"
def sr(a, n=1):
    return f"s{a}" if n == 1 else f"s[{a}:{a+n-1}]"

def srd(g, dst, lo, hi, nbytes):
    g(f"s_mov_b32 s{dst}, s{lo}")
    g(f"s_mov_b32 s{dst+1}, s{hi}")
    g(f"s_mov_b32 s{dst+2}, {hex(nbytes)}")
    g(f"s_mov_b32 s{dst+3}, 0x00020000")

def kernel_header(name):
    return f""".text
.globl {name}
.p2align 8
.type {name},@function
{name}:
"""

def kernel_desc(name, vgprs, sgprs=96, accum=None):
    if STAMPS:
        sgprs = 96
        vgprs = max(vgprs, STAMP_MINV.get(name, 256)); accum = None
    acc = accum if accum is not None else ((vgprs + 3) // 4) * 4
    return f""".section .rodata,"a"
.p2align 6
.amdhsa_kernel {name}
  .amdhsa_next_free_vgpr {vgprs}
  .amdhsa_next_free_sgpr {sgprs}
  .amdhsa_accum_offset {acc}
  .amdhsa_group_segment_fixed_size 0
  .amdhsa_kernarg_size 88
  .amdhsa_user_sgpr_count 2
  .amdhsa_user_sgpr_kernarg_segment_ptr 1
  .amdhsa_system_sgpr_workgroup_id_x 1
  .amdhsa_float_denorm_mode_32 3
.end_amdhsa_kernel
.text
"""


CODE_START, CODE_END = "L_code_start", "L_code_end"
def code_prefetch(g, uid, vtmp, stmp, piece_sreg):
    g(f"""
    s_getpc_b64 s[{stmp}:{stmp+1}]
    L_pc_{uid}:
    s_sub_u32 s{stmp}, s{stmp}, (L_pc_{uid} - {CODE_START})
    s_subb_u32 s{stmp+1}, s{stmp+1}, 0
    s_lshl_b32 s{stmp+2}, s{piece_sreg}, 13
    v_lshlrev_b32 v{vtmp}, 7, v0
    v_add_u32 v{vtmp}, s{stmp+2}, v{vtmp}
    v_min_u32 v{vtmp}, ({CODE_END} - {CODE_START} - 4), v{vtmp}
    global_load_dword v{vtmp+1}, v{vtmp}, s[{stmp}:{stmp+1}]
    """)
```

```python
from common import *

LOG2E = 1.4426950408889634
GELU_C0 = -2.0 * LOG2E * math.sqrt(2.0 / math.pi)
GELU_C1 = GELU_C0 * 0.044715
EPS = 1e-5

S_W   = 8
S_WS  = 12
S_OUT = 16
S_TB, S_J, S_WAVE, S_TT, S_NG = 20, 21, 22, 23, 24
S_KB, S_KA, S_DMA = 25, 26, 27
S_T   = 28
S_TMP = 30
S_EXEC = 40

class Cfg:
    pass
KIDX = {"qkv_kernel": 0, "attn_kernel": 1, "wo_kernel": 2, "w1_kernel": 3, "w2_kernel": 4, "w3_kernel": 5, "w4a_kernel": 6, "w4b_kernel": 7}

def unpack_lo(g, dst, src): g(f"v_lshlrev_b32 v{dst}, 16, v{src}")
def unpack_hi(g, dst, src): g(f"v_and_b32 v{dst}, 0xffff0000, v{src}")

def gemm_prologue(g, name, c):
    g(kernel_header(name))
    g.stamp("start")
    g(f"""
    s_cmp_ge_u32 s2, 256
    s_cbranch_scc1 L_{name}_end
    s_load_dwordx2 s[6:7], s[0:1], {KA_WS}
    """)
    if c.need_out:
        g(f"s_load_dwordx2 s[{S_TMP+2}:{S_TMP+3}], s[0:1], {KA_OUT}")
    g(f"""
    v_lshrrev_b32 v1, 6, v0
    v_and_b32 v0, 63, v0                 ; lane
    s_and_b32 s{S_TMP}, s2, 7            ; xcd
    s_lshr_b32 s{S_TMP+1}, s2, 3         ; idx
    v_readfirstlane_b32 s{S_WAVE}, v1
    s_and_b32 s{S_J}, s{S_TMP+1}, 7
    s_lshr_b32 s{S_TMP+1}, s{S_TMP+1}, 3
    s_lshl_b32 s{S_TB}, s{S_TMP}, 2
    s_add_u32 s{S_TB}, s{S_TB}, s{S_TMP+1}
    s_and_b32 s{S_TT}, s{S_WAVE}, 1
    s_lshr_b32 s{S_NG}, s{S_WAVE}, 1
    s_lshl_b32 s{S_T}, s{S_TB}, 1
    s_add_u32 s{S_T}, s{S_T}, s{S_TT}
    s_waitcnt lgkmcnt(0)
    """)
    srd(g, S_WS, 6, 7, WS_USED)
    if c.need_out:
        srd(g, S_OUT, S_TMP+2, S_TMP+3, S * D * 2)

def gemm_main(g, name, c, V):
    KS, NTn, NB = c.KS, c.NTn, c.NB
    SB = (2 + NTn) * 1024
    CB = 4 * SB
    NC = KS // 4
    tstride = KS * 1024
    vB, vA = V['vB'], V['vA']
    t0, t1, t2 = V['t0'], V['t0']+1, V['t0']+2
    if not c.shift:
        g(f"""
        s_lshl_b32 s{S_TMP}, s{S_TB}, 1
        s_mul_i32 s{S_TMP}, s{S_TMP}, {tstride}
        s_lshl_b32 s{S_TMP+1}, s{S_WAVE}, 10
        s_add_u32 s{S_TMP}, s{S_TMP}, s{S_TMP+1}
        s_add_u32 s{S_TMP}, s{S_TMP}, {c.b_off}
        v_lshlrev_b32 v{vB}, 4, v0
        v_add_u32 v{vB}, s{S_TMP}, v{vB}
        v_add_u32 v{vB+1}, {tstride}, v{vB}
        """)
    else:
        g(f"""
        s_lshl_b32 s{S_TMP}, s{S_TB}, 6
        v_and_b32 v{t0}, 31, v0
        v_add_u32 v{t0}, s{S_TMP}, v{t0}
        v_lshrrev_b32 v{t1}, 5, v0
        v_lshlrev_b32 v{t1}, 9, v{t1}             ; h*512
        s_lshl_b32 s{S_TMP+1}, s{S_WAVE}, 10
        s_add_u32 s{S_TMP+1}, s{S_TMP+1}, {c.b_off}
        v_add_u32 v{t1}, s{S_TMP+1}, v{t1}        ; base + w*1024 + h*512
        s_mov_b32 s{S_TMP+2}, 0x80000000
        """)
        for gi, dl in enumerate((-1, 1, -2, 2)):
            for tile in range(2):
                r = vB + 2*gi + tile
                g(f"""
                v_add_u32 v{r}, {32*tile + dl}, v{t0}
                v_cmp_gt_u32 vcc, {S}, v{r}
                v_lshrrev_b32 v{t2}, 5, v{r}
                v_and_b32 v{r}, 31, v{r}
                v_lshlrev_b32 v{r}, 4, v{r}
                v_lshl_add_u32 v{r}, v{t2}, {int(math.log2(tstride))}, v{r}
                v_add_u32 v{r}, v{r}, v{t1}
                v_mov_b32 v{t2}, s{S_TMP+2}
                v_cndmask_b32 v{r}, v{t2}, v{r}, vcc
                """)
    g(f"""
    s_mul_i32 s{S_TMP}, s{S_J}, {c.tiles_j * KS * 1024}
    s_lshl_b32 s{S_TMP+1}, s{S_WAVE}, 10
    s_add_u32 s{S_TMP}, s{S_TMP}, s{S_TMP+1}
    s_add_u32 s{S_TMP}, s{S_TMP}, {c.w_off}
    v_lshlrev_b32 v{vA}, 4, v0
    v_add_u32 v{vA}, s{S_TMP}, v{vA}
    s_mul_i32 s{S_DMA}, s{S_WAVE}, {SB}
    """)
    def dma(chunk):
        slot = chunk % NB
        for tile in range(2):
            g(f"s_add_u32 m0, s{S_DMA}, {slot*CB + tile*1024}")
            g(f"s_mov_b32 s{S_KB}, {chunk * 4096}")
            r = vB + tile if not c.shift else vB + 2*(chunk >> 1) + tile
            g.vmem(f"buffer_load_dwordx4 v{r}, s[{S_WS}:{S_WS+3}], s{S_KB} offen lds", f"d{chunk}")
        for nt in range(NTn):
            g(f"s_add_u32 m0, s{S_DMA}, {slot*CB + (2+nt)*1024}")
            g(f"s_mov_b32 s{S_KA}, {chunk * 4096 + c.tile_list[nt] * KS * 1024}")
            g.vmem(f"buffer_load_dwordx4 v{vA}, s[{S_WS}:{S_WS+3}], s{S_KA} offen lds", f"d{chunk}")
    nup = min(NB, NC)
    g.stamp("pre_dma")
    for ch in range(nup):
        dma(ch)
    g.stamp("dma_issued")
    nbase = (NB * CB + 65535) // 65536
    vRA, vRB = V['vRA'], V['vRB']
    g(f"""
    s_mul_i32 s{S_TMP}, s{S_NG}, {c.ng_stride * 1024}
    s_add_u32 s{S_TMP}, s{S_TMP}, 2048
    v_lshlrev_b32 v{vRB}, 4, v0
    v_add_u32 v{vRA}, s{S_TMP}, v{vRB}
    s_lshl_b32 s{S_TMP}, s{S_TT}, 10
    v_add_u32 v{vRB}, s{S_TMP}, v{vRB}
    """)
    for k in range(1, nbase):
        g(f"v_add_u32 v{vRA+k}, {65536*k}, v{vRA}")
        g(f"v_add_u32 v{vRB+k}, {65536*k}, v{vRB}")
    c.epi_loads(g, c, V)
    NW = c.NW
    LA = c.LA
    nset = LA + 1
    fr = V['frag']
    FS = 4*NW + 4
    acc = V['acc']
    def reads(q):
        st = fr + (q % nset) * FS
        ch, i = divmod(q, 4)
        base = (ch % NB) * CB + i * SB
        k, o = divmod(base, 65536)
        assert o + 1024 < 65536 + 1024
        ob = base
        kb, imm = divmod(ob, 65536)
        g.lds(f"ds_read_b128 v[{st}:{st+3}], v{vRB+kb} offset:{imm}", f"r{q}")
        for w in range(NW):
            oa = base + w * c.tile_stride * 1024
            ka, imm = divmod(oa, 65536)
            d = st + 4 + 4*w
            g.lds(f"ds_read_b128 v[{d}:{d+3}], v{vRA+ka} offset:{imm}", f"r{q}")
    def mfmas(q):
        st = fr + (q % nset) * FS
        for w in range(NW):
            a = acc + 16*w
            cin = "0" if q == 0 else f"v[{a}:{a+15}]"
            A = f"v[{st+4+4*w}:{st+7+4*w}]"; B = f"v[{st}:{st+3}]"
            if c.swapped[w]:
                A, B = B, A
            g(f"v_mfma_f32_32x32x16_bf16 v[{a}:{a+15}], {A}, {B}, {cin}")
    g.wait_vm("d0")
    g("s_barrier")
    g.stamp("d0_landed")
    for q in range(min(LA, KS)):
        reads(q)
    for ch in range(NC):
        if ch + 1 < NC:
            g.wait_vm(f"d{ch+1}")
            g("s_barrier")
            if ch >= 1 and ch + NB - 1 < NC and ch + NB - 1 >= nup:
                dma(ch + NB - 1)
        for i in range(4):
            q = 4*ch + i
            if q + LA < KS:
                reads(q + LA)
            g.wait_lg(f"r{q}")
            mfmas(q)
    g.stamp("loop_done")

def load_stats(g, c, V, off, tag):
    st = V['st']
    g(f"""
    s_lshl_b32 s{S_TMP}, s{S_T}, 12
    s_add_u32 s{S_TMP}, s{S_TMP}, {off}
    v_lshlrev_b32 v{V['t0']}, 2, v0
    v_add_u32 v{V['t0']}, s{S_TMP}, v{V['t0']}
    """)
    for p in range(16):
        g.vmem(f"buffer_load_dword v{st+p}, v{V['t0']}, s[{S_WS}:{S_WS+3}], 0 offen offset:{256*p}", tag)

def reduce_stats(g, V, vm, vvar):
    st = V['st']
    for k in (8, 4, 2, 1):
        for i in range(k):
            g(f"v_add_f32 v{st+i}, v{st+i}, v{st+i+k}")
    g(f"v_mov_b32 v{st+1}, v{st}")
    g("s_nop 1")
    g(f"v_permlane32_swap_b32 v{st}, v{st+1}")
    g("s_nop 1")
    g(f"v_mul_f32 v{vm}, {fl(1.0/D)}, v{st}")
    g(f"v_mul_f32 v{vvar}, {fl(1.0/D)}, v{st+1}")
    g(f"v_fma_f32 v{vvar}, -v{vm}, v{vm}, v{vvar}")
    g(f"v_max_f32 v{vvar}, 0, v{vvar}")

def rsq_eps(g, dst, src):
    g(f"v_add_f32 v{dst}, {fl(EPS)}, v{src}")
    g(f"v_rsq_f32 v{dst}, v{dst}")
    g("s_nop 0")

def load_frag2(g, V, dst, ws_off, nslab_t, slab_s_expr_sreg, tag):
    g(f"""
    s_mul_i32 s{S_TMP}, s{S_T}, {nslab_t*1024}
    s_lshl_b32 s{S_TMP+1}, s{slab_s_expr_sreg}, 10
    s_add_u32 s{S_TMP}, s{S_TMP}, s{S_TMP+1}
    s_add_u32 s{S_TMP}, s{S_TMP}, {ws_off}
    v_lshlrev_b32 v{V['t0']}, 4, v0
    v_add_u32 v{V['t0']}, s{S_TMP}, v{V['t0']}
    """)
    g.vmem(f"buffer_load_dwordx4 v[{dst}:{dst+3}], v{V['t0']}, s[{S_WS}:{S_WS+3}], 0 offen", tag)
    g.vmem(f"buffer_load_dwordx4 v[{dst+4}:{dst+7}], v{V['t0']}, s[{S_WS}:{S_WS+3}], 0 offen offset:1024", tag)

def load_cs(g, V, dst, cs_off_sreg, tag, imm_tile=0):
    g(f"""
    v_lshrrev_b32 v{V['t0']}, 5, v0
    v_lshlrev_b32 v{V['t0']}, 4, v{V['t0']}
    v_add_u32 v{V['t0']}, s{cs_off_sreg}, v{V['t0']}
    """)
    for gq in range(4):
        g.vmem(f"buffer_load_dwordx4 v[{dst+4*gq}:{dst+4*gq+3}], v{V['t0']}, s[{S_WS}:{S_WS+3}], 0 offen offset:{imm_tile*128 + 32*gq}", tag)

def stats_partial_store(g, V, vals, ws_off, part_sreg):
    a, b = V['t0'], V['t0'] + 2
    g(f"v_pk_add_f32 v[{a}:{a+1}], v[{vals}:{vals+1}], v[{vals+2}:{vals+3}]")
    g(f"v_pk_mul_f32 v[{b}:{b+1}], v[{vals}:{vals+1}], v[{vals}:{vals+1}]")
    g(f"v_pk_fma_f32 v[{b}:{b+1}], v[{vals+2}:{vals+3}], v[{vals+2}:{vals+3}], v[{b}:{b+1}]")
    for i in range(4, 16, 2):
        g(f"v_pk_add_f32 v[{a}:{a+1}], v[{a}:{a+1}], v[{vals+i}:{vals+i+1}]")
        g(f"v_pk_fma_f32 v[{b}:{b+1}], v[{vals+i}:{vals+i+1}], v[{vals+i}:{vals+i+1}], v[{b}:{b+1}]")
    g(f"v_add_f32 v{a}, v{a}, v{a+1}")
    g(f"v_add_f32 v{a+1}, v{b}, v{b+1}")
    g("s_nop 1")
    g(f"v_permlane32_swap_b32 v{a}, v{a+1}")
    g("s_nop 1")
    g(f"v_add_f32 v{a}, v{a}, v{a+1}")
    g(f"""
    s_lshl_b32 s{S_TMP}, s{S_T}, 12
    s_lshl_b32 s{S_TMP+1}, s{part_sreg}, 8
    s_add_u32 s{S_TMP}, s{S_TMP}, s{S_TMP+1}
    s_add_u32 s{S_TMP}, s{S_TMP}, {ws_off}
    v_lshlrev_b32 v{b}, 2, v0
    v_add_u32 v{b}, s{S_TMP}, v{b}
    """)
    g.vmem(f"buffer_store_dword v{a}, v{b}, s[{S_WS}:{S_WS+3}], 0 offen", "st")

def pack_store_F(g, V, vals, addr_reg, pk, imm0=0, srd_s=S_WS):
    for i in range(8):
        g(f"v_cvt_pk_bf16_f32 v{pk+i}, v{vals+2*i}, v{vals+2*i+1}")
    g.vmem(f"buffer_store_dwordx4 v[{pk}:{pk+3}], v{addr_reg}, s[{srd_s}:{srd_s+3}], 0 offen offset:{imm0}", "st")
    g.vmem(f"buffer_store_dwordx4 v[{pk+4}:{pk+7}], v{addr_reg}, s[{srd_s}:{srd_s+3}], 0 offen offset:{imm0+1024}", "st")

def f_addr(g, V, dst, ws_off, nslab_t, slab_sreg):
    g(f"""
    s_mul_i32 s{S_TMP}, s{S_T}, {nslab_t*1024}
    s_lshl_b32 s{S_TMP+1}, s{slab_sreg}, 10
    s_add_u32 s{S_TMP}, s{S_TMP}, s{S_TMP+1}
    s_add_u32 s{S_TMP}, s{S_TMP}, {ws_off}
    v_lshlrev_b32 v{dst}, 4, v0
    v_add_u32 v{dst}, s{S_TMP}, v{dst}
    """)

def gelu16(g, V, u, tmp):
    gc = V['gc']
    for i in range(0, 16, 2):
        g(f"v_pk_mul_f32 v[{tmp+i}:{tmp+i+1}], v[{u+i}:{u+i+1}], v[{u+i}:{u+i+1}]")
    for i in range(0, 16, 2):
        g(f"v_pk_fma_f32 v[{tmp+i}:{tmp+i+1}], v[{tmp+i}:{tmp+i+1}], v[{gc}:{gc+1}], v[{gc}:{gc+1}] op_sel:[0,1,0] op_sel_hi:[1,1,0]")
    for i in range(0, 16, 2):
        g(f"v_pk_mul_f32 v[{tmp+i}:{tmp+i+1}], v[{tmp+i}:{tmp+i+1}], v[{u+i}:{u+i+1}]")
    for i in range(16):
        g(f"v_exp_f32 v{tmp+i}, v{tmp+i}")
    for i in range(0, 16, 2):
        g(f"v_pk_add_f32 v[{tmp+i}:{tmp+i+1}], v[{tmp+i}:{tmp+i+1}], 1.0 op_sel_hi:[1,0]")
    for i in range(16):
        g(f"v_rcp_f32 v{tmp+i}, v{tmp+i}")
    for i in range(0, 16, 2):
        g(f"v_pk_mul_f32 v[{u+i}:{u+i+1}], v[{u+i}:{u+i+1}], v[{tmp+i}:{tmp+i+1}]")

def mfma_drain(g):
    g("s_nop 15")

def ln_affine(g, acc, cs, vneg_m_a, va):
    assert vneg_m_a == va + 1
    for i in range(0, 16, 2):
        g(f"v_pk_mul_f32 v[{cs+i}:{cs+i+1}], v[{cs+i}:{cs+i+1}], v[{va}:{va+1}] op_sel:[0,1] op_sel_hi:[1,1]")
    for i in range(0, 16, 2):
        g(f"v_pk_fma_f32 v[{acc+i}:{acc+i+1}], v[{acc+i}:{acc+i+1}], v[{va}:{va+1}], v[{cs+i}:{cs+i+1}] op_sel:[0,0,0] op_sel_hi:[1,0,1]")

def unpack8(g, dst, src):
    for i in range(8):
        unpack_lo(g, dst+2*i, src+i)
        unpack_hi(g, dst+2*i+1, src+i)

def base_regs(c, extra):
    V = {}
    n = 1
    def al(name, cnt, align=1):
        nonlocal n
        n = (n + align - 1) // align * align
        V[name] = n; n += cnt
    al('t0', 6, 2)
    al('vB', 8 if c.shift else 2)
    al('vA', 1)
    nbase = (c.NB * 4 * (2 + c.NTn) * 1024 + 65535) // 65536
    al('vRA', nbase); al('vRB', nbase)
    al('frag', (c.LA + 1) * (4*c.NW + 4), 4)
    al('acc', 16 * c.NW, 4)
    for name, cnt, align in extra:
        al(name, cnt, align)
    V['_n'] = n
    return V

def finish(g, name, c, V):
    g.stamp("epi_issued")
    if STAMPS:
        g("s_waitcnt vmcnt(0)")
        g.stamp("stores_done")
    g.stamp_flush(KIDX[name], S_WAVE)
    g(f"L_{name}_end:")
    g("s_endpgm")
    lds = c.NB * 4 * (2 + c.NTn) * 1024
    return g.text() + kernel_desc(name, max(V['_n'], 32), 64), dict(name=name, grid=256, block=256, lds=lds)

def cfg512(w_off, b_off, KS=32, shift=False):
    c = Cfg()
    c.w_off = w_off; c.KS = KS; c.NTn = 2; c.NB = 8; c.NW = 1; c.LA = 4
    c.tiles_j = 2; c.tile_list = [0, 1]
    c.ng_stride = 1; c.tile_stride = 1; c.swapped = [False]
    c.b_off = b_off; c.shift = shift; c.need_out = False
    return c

def slab_sreg(g, sreg):
    g(f"s_lshl_b32 s{sreg}, s{S_J}, 1")
    g(f"s_add_u32 s{sreg}, s{sreg}, s{S_NG}")
    g(f"s_lshl_b32 s{sreg+1}, s{sreg}, 1")

S_PART, S_SLAB = 44, 45

def wo_kernel(name):
    c = cfg512(WS_WO, WS_O)
    V = base_regs(c, [('res', 8, 4), ('val', 16, 4), ('pk', 8, 4), ('ad', 1, 1)])
    def epi_loads(g, c, V):
        slab_sreg(g, S_PART)
        load_frag2(g, V, V['res'], WS_X, 32, S_SLAB, "res")
    c.epi_loads = epi_loads
    g = Gen(); gemm_prologue(g, name, c); gemm_main(g, name, c, V)
    val, acc = V['val'], V['acc']
    g.wait_vm("res")
    unpack8(g, val, V['res'])
    f_addr(g, V, V['ad'], WS_X1, 32, S_SLAB)
    mfma_drain(g)
    for i in range(0, 16, 2):
        g(f"v_pk_add_f32 v[{val+i}:{val+i+1}], v[{val+i}:{val+i+1}], v[{acc+i}:{acc+i+1}]")
    pack_store_F(g, V, val, V['ad'], V['pk'])
    stats_partial_store(g, V, val, WS_SX1, S_PART)
    return finish(g, name, c, V)

def w1_kernel(name):
    c = cfg512(WS_W1, WS_X1)
    V = base_regs(c, [('st', 16, 4), ('cs', 16, 4), ('tmp', 16, 4), ('pk', 8, 4), ('ab', 2, 2), ('gc', 2, 2), ('mv', 4, 2), ('ad', 1, 1)])
    def epi_loads(g, c, V):
        slab_sreg(g, S_PART)
        load_stats(g, c, V, WS_SX1, "st")
        g(f"s_lshl_b32 s{S_TMP+3}, s{S_PART}, 7")
        g(f"s_add_u32 s{S_TMP+3}, s{S_TMP+3}, {WS_CS1}")
        load_cs(g, V, V['cs'], S_TMP+3, "cs")
    c.epi_loads = epi_loads
    g = Gen(); gemm_prologue(g, name, c); gemm_main(g, name, c, V)
    acc, ab, mv = V['acc'], V['ab'], V['mv']
    g.wait_vm(["st", "cs"])
    reduce_stats(g, V, mv, mv+1)
    rsq_eps(g, mv+2, mv+1)
    g(f"v_mul_f32 v{mv+3}, v{mv+2}, v{mv+2}")
    g(f"v_mul_f32 v{mv+3}, v{mv+3}, v{mv+1}")
    rsq_eps(g, mv+3, mv+3)
    g(f"v_mul_f32 v{ab}, v{mv+2}, v{mv+3}")
    g(f"v_mul_f32 v{ab+1}, -v{mv}, v{ab}".replace("v_mul_f32", "v_mul_f32_e64"))
    g(f"v_mov_b32 v{V['gc']}, {fl(GELU_C0)}")
    g(f"v_mov_b32 v{V['gc']+1}, {fl(GELU_C1)}")
    g(f"""
    s_or_b32 s{S_TMP}, s{S_J}, s{S_NG}
    s_cmp_lg_u32 s{S_TMP}, 0
    s_cbranch_scc1 L_{name}_noexp
    v_cmp_gt_u32 vcc, 32, v0
    v_lshlrev_b32 v{V['t0']+1}, 2, v0
    s_lshl_b32 s{S_TMP}, s{S_T}, 8
    s_add_u32 s{S_TMP}, s{S_TMP}, {WS_MR}
    v_cndmask_b32 v{V['t0']}, v{mv+2}, v{mv}, vcc
    v_add_u32 v{V['t0']+1}, s{S_TMP}, v{V['t0']+1}
    buffer_store_dword v{V['t0']}, v{V['t0']+1}, s[{S_WS}:{S_WS+3}], 0 offen
    L_{name}_noexp:
    """)
    f_addr(g, V, V['ad'], WS_H, 32, S_SLAB)
    mfma_drain(g)
    ln_affine(g, acc, V['cs'], ab+1, ab)
    gelu16(g, V, acc, V['tmp'])
    pack_store_F(g, V, acc, V['ad'], V['pk'])
    return finish(g, name, c, V)

def w2_kernel(name):
    c = cfg512(WS_W2, WS_H, shift=True)
    V = base_regs(c, [('res', 8, 4), ('val', 16, 4), ('pk', 8, 4), ('mr', 2, 2), ('ab', 2, 2), ('ad', 1, 1)])
    def epi_loads(g, c, V):
        slab_sreg(g, S_PART)
        load_frag2(g, V, V['res'], WS_X1, 32, S_SLAB, "res")
        g(f"""
        s_lshl_b32 s{S_TMP}, s{S_T}, 8
        s_add_u32 s{S_TMP}, s{S_TMP}, {WS_MR}
        v_and_b32 v{V['t0']}, 31, v0
        v_lshlrev_b32 v{V['t0']}, 2, v{V['t0']}
        v_add_u32 v{V['t0']}, s{S_TMP}, v{V['t0']}
        """)
        g.vmem(f"buffer_load_dword v{V['mr']}, v{V['t0']}, s[{S_WS}:{S_WS+3}], 0 offen", "res")
        g.vmem(f"buffer_load_dword v{V['mr']+1}, v{V['t0']}, s[{S_WS}:{S_WS+3}], 0 offen offset:128", "res")
    c.epi_loads = epi_loads
    g = Gen(); gemm_prologue(g, name, c); gemm_main(g, name, c, V)
    val, acc, ab, mr = V['val'], V['acc'], V['ab'], V['mr']
    g.wait_vm("res")
    unpack8(g, val, V['res'])
    g(f"v_mov_b32 v{ab}, v{mr+1}")
    g(f"v_mul_f32_e64 v{ab+1}, -v{mr}, v{mr+1}")
    f_addr(g, V, V['ad'], WS_Y, 32, S_SLAB)
    for i in range(0, 16, 2):
        g(f"v_pk_fma_f32 v[{val+i}:{val+i+1}], v[{val+i}:{val+i+1}], v[{ab}:{ab+1}], v[{ab}:{ab+1}] op_sel:[0,0,1] op_sel_hi:[1,0,1]")
    mfma_drain(g)
    for i in range(0, 16, 2):
        g(f"v_pk_add_f32 v[{val+i}:{val+i+1}], v[{val+i}:{val+i+1}], v[{acc+i}:{acc+i+1}]")
    pack_store_F(g, V, val, V['ad'], V['pk'])
    stats_partial_store(g, V, val, WS_SY, S_PART)
    return finish(g, name, c, V)

def w3_kernel(name):
    c = Cfg()
    c.w_off = WS_W3; c.KS = 32; c.NTn = 7; c.NB = 4; c.NW = 4; c.LA = 1
    c.tiles_j = 7; c.tile_list = list(range(7))
    c.ng_stride = 3; c.tile_stride = 1; c.swapped = [False]*4
    c.b_off = WS_Y; c.shift = False; c.need_out = False
    V = base_regs(c, [('st', 16, 4), ('cs', 64, 4), ('tmp', 16, 4), ('pk', 8, 4), ('ab', 2, 2), ('gc', 2, 2), ('mv', 4, 2), ('ad', 1, 1)])
    def epi_loads(g, c, V):
        g(f"s_mul_i32 s{S_PART}, s{S_J}, 7")
        g(f"s_mul_i32 s{S_TMP}, s{S_NG}, 3")
        g(f"s_add_u32 s{S_PART}, s{S_PART}, s{S_TMP}")
        g(f"s_lshl_b32 s{S_SLAB}, s{S_PART}, 1")
        load_stats(g, c, V, WS_SY, "st")
        g(f"s_lshl_b32 s{S_TMP+3}, s{S_PART}, 7")
        g(f"s_add_u32 s{S_TMP+3}, s{S_TMP+3}, {WS_CS3}")
        for w in range(4):
            load_cs(g, V, V['cs'] + 16*w, S_TMP+3, "cs", imm_tile=w)
    c.epi_loads = epi_loads
    g = Gen(); gemm_prologue(g, name, c); gemm_main(g, name, c, V)
    acc, ab, mv = V['acc'], V['ab'], V['mv']
    g.wait_vm(["st", "cs"])
    reduce_stats(g, V, mv, mv+1)
    rsq_eps(g, ab, mv+1)
    g(f"v_mul_f32_e64 v{ab+1}, -v{mv}, v{ab}")
    g(f"v_mov_b32 v{V['gc']}, {fl(GELU_C0)}")
    g(f"v_mov_b32 v{V['gc']+1}, {fl(GELU_C1)}")
    f_addr(g, V, V['ad'], WS_G, 112, S_SLAB)
    mfma_drain(g)
    for w in range(4):
        ln_affine(g, acc+16*w, V['cs']+16*w, ab+1, ab)
        gelu16(g, V, acc+16*w, V['tmp'])
        pack_store_F(g, V, acc+16*w, V['ad'], V['pk'])
        if w < 3:
            g(f"v_add_u32 v{V['ad']}, 2048, v{V['ad']}")
            g("s_nop 0")
    return finish(g, name, c, V)

def w4_kernel(name, final):
    c = cfg512(WS_W4, WS_G, KS=112)
    c.need_out = final
    V = base_regs(c, [('res', 8, 4), ('res2', 8, 4), ('val', 16, 4), ('val2', 16, 4), ('pk', 8, 4), ('ad', 1, 1)])
    def epi_loads(g, c, V):
        slab_sreg(g, S_PART)
        load_frag2(g, V, V['res'], WS_X1, 32, S_SLAB, "res")
        load_frag2(g, V, V['res2'], WS_Y, 32, S_SLAB, "res")
    c.epi_loads = epi_loads
    g = Gen(); gemm_prologue(g, name, c); gemm_main(g, name, c, V)
    val, val2, acc, pk = V['val'], V['val2'], V['acc'], V['pk']
    g.wait_vm("res")
    unpack8(g, val, V['res'])
    unpack8(g, val2, V['res2'])
    mfma_drain(g)
    for i in range(0, 16, 2):
        g(f"v_pk_add_f32 v[{val2+i}:{val2+i+1}], v[{val2+i}:{val2+i+1}], v[{acc+i}:{acc+i+1}]")
    for i in range(0, 16, 2):
        g(f"v_pk_add_f32 v[{val+i}:{val+i+1}], v[{val+i}:{val+i+1}], v[{val2+i}:{val2+i+1}]")
    if not final:
        f_addr(g, V, V['ad'], WS_X, 32, S_SLAB)
        pack_store_F(g, V, val, V['ad'], V['pk'])
        stats_partial_store(g, V, val, WS_SX, S_PART)
    else:
        t0 = V['t0']
        g(f"""
        s_lshl_b32 s{S_TMP}, s{S_T}, 15
        s_lshl_b32 s{S_TMP+1}, s{S_PART}, 6
        s_add_u32 s{S_TMP}, s{S_TMP}, s{S_TMP+1}
        v_and_b32 v{t0}, 31, v0
        v_lshlrev_b32 v{t0}, 10, v{t0}
        v_lshrrev_b32 v{t0+1}, 5, v0
        v_lshl_add_u32 v{t0}, v{t0+1}, 4, v{t0}
        v_add_u32 v{V['ad']}, s{S_TMP}, v{t0}
        """)
        for i in range(8):
            g(f"v_cvt_pk_bf16_f32 v{pk+i}, v{val+2*i}, v{val+2*i+1}")
        g("s_nop 1")
        for sl in range(2):
            b = pk + 4*sl
            g(f"v_permlane32_swap_b32 v{b}, v{b+2}")
            g(f"v_permlane32_swap_b32 v{b+1}, v{b+3}")
        g("s_nop 1")
        for sl in range(2):
            b = pk + 4*sl
            g.vmem(f"buffer_store_dwordx4 v[{b}:{b+3}], v{V['ad']}, s[{S_OUT}:{S_OUT+3}], 0 offen offset:{32*sl}", "st")
    return finish(g, name, c, V)

QSCALE = 0.25 * LOG2E

def qkv_kernel(name):
    c = Cfg()
    c.w_off = WS_WQ; c.KS = 32; c.NTn = 6; c.NB = 4; c.NW = 3; c.LA = 3
    c.tiles_j = 2; c.tile_list = [0, 1, 16, 17, 32, 33]
    c.ng_stride = 1; c.tile_stride = 2; c.swapped = [False, False, True]
    c.b_off = WS_X; c.shift = False; c.need_out = False
    V = base_regs(c, [('st', 16, 4), ('cs', 32, 4), ('csv', 1, 1), ('pk', 8, 4), ('ab', 2, 2), ('abq', 2, 2), ('mv', 4, 2), ('ad', 1, 1), ('rowa', 16, 4), ('rowb', 16, 4)])
    def epi_loads(g, c, V):
        slab_sreg(g, S_PART)
        load_stats(g, c, V, WS_SX, "st")
        g(f"s_lshl_b32 s{S_TMP+3}, s{S_PART}, 7")
        g(f"s_add_u32 s{S_TMP+3}, s{S_TMP+3}, {WS_CSQ}")
        load_cs(g, V, V['cs'], S_TMP+3, "cs")
        g(f"s_add_u32 s{S_TMP+3}, s{S_TMP+3}, 2048")
        load_cs(g, V, V['cs']+16, S_TMP+3, "cs")
        g(f"s_add_u32 s{S_TMP+3}, s{S_TMP+3}, 2048")
        g(f"v_and_b32 v{V['t0']}, 31, v0")
        g(f"v_lshlrev_b32 v{V['t0']}, 2, v{V['t0']}")
        g(f"v_add_u32 v{V['t0']}, s{S_TMP+3}, v{V['t0']}")
        g.vmem(f"buffer_load_dword v{V['csv']}, v{V['t0']}, s[{S_WS}:{S_WS+3}], 0 offen", "cs")
    c.epi_loads = epi_loads
    g = Gen(); gemm_prologue(g, name, c); gemm_main(g, name, c, V)
    acc, ab, abq, mv, t0, pk = V['acc'], V['ab'], V['abq'], V['mv'], V['t0'], V['pk']
    g.wait_vm(["st", "cs"])
    reduce_stats(g, V, mv, mv+1)
    rsq_eps(g, ab, mv+1)
    g(f"v_mul_f32_e64 v{ab+1}, -v{mv}, v{ab}")
    g(f"v_mul_f32 v{abq}, {fl(QSCALE)}, v{ab}")
    g(f"v_mul_f32 v{abq+1}, {fl(QSCALE)}, v{ab+1}")
    g("s_waitcnt lgkmcnt(0)")
    g("s_barrier")
    g(f"""
    s_lshl_b32 s{S_TMP}, s{S_WAVE}, 8
    v_and_b32 v{t0}, 31, v0
    v_lshlrev_b32 v{t0}, 2, v{t0}
    v_add_u32 v{t0}, s{S_TMP}, v{t0}
    ds_write_b32 v{t0}, v{ab}
    ds_write_b32 v{t0}, v{ab+1} offset:128
    v_lshrrev_b32 v{t0+1}, 5, v0
    v_lshlrev_b32 v{t0+1}, 4, v{t0+1}
    v_add_u32 v{t0+1}, s{S_TMP}, v{t0+1}
    s_waitcnt lgkmcnt(0)
    """)
    for gq in range(4):
        g(f"ds_read_b128 v[{V['rowa']+4*gq}:{V['rowa']+4*gq+3}], v{t0+1} offset:{32*gq}")
        g(f"ds_read_b128 v[{V['rowb']+4*gq}:{V['rowb']+4*gq+3}], v{t0+1} offset:{128+32*gq}")
    g(f"""
    s_lshl_b32 s{S_TMP}, s{S_PART}, 17
    s_lshl_b32 s{S_TMP+1}, s{S_T}, 10
    s_add_u32 s{S_TMP+2}, s{S_TMP}, s{S_TMP+1}
    v_lshlrev_b32 v{V['ad']}, 4, v0
    v_add_u32 v{V['ad']}, s{S_TMP+2}, v{V['ad']}
    """)
    mfma_drain(g)
    def store_heads(vals, ws_off):
        for i in range(8):
            g(f"v_cvt_pk_bf16_f32 v{pk+i}, v{vals+2*i}, v{vals+2*i+1}")
        g(f"s_mov_b32 s{S_TMP+4}, {ws_off}")
        g(f"s_mov_b32 s{S_TMP+5}, {ws_off + 65536}")
        g.vmem(f"buffer_store_dwordx4 v[{pk}:{pk+3}], v{V['ad']}, s[{S_WS}:{S_WS+3}], s{S_TMP+4} offen", "st")
        g.vmem(f"buffer_store_dwordx4 v[{pk+4}:{pk+7}], v{V['ad']}, s[{S_WS}:{S_WS+3}], s{S_TMP+5} offen", "st")
        g("s_nop 1")
    ln_affine(g, acc, V['cs'], abq+1, abq)
    store_heads(acc, WS_Q)
    k = acc + 16
    ln_affine(g, k, V['cs']+16, ab+1, ab)
    store_heads(k, WS_K)
    g(f"v_pk_mul_f32 v[{t0}:{t0+1}], v[{k}:{k+1}], v[{k}:{k+1}]")
    g(f"v_pk_mul_f32 v[{t0+2}:{t0+3}], v[{k+8}:{k+9}], v[{k+8}:{k+9}]")
    for i in range(2, 8, 2):
        g(f"v_pk_fma_f32 v[{t0}:{t0+1}], v[{k+i}:{k+i+1}], v[{k+i}:{k+i+1}], v[{t0}:{t0+1}]")
        g(f"v_pk_fma_f32 v[{t0+2}:{t0+3}], v[{k+8+i}:{k+8+i+1}], v[{k+8+i}:{k+8+i+1}], v[{t0+2}:{t0+3}]")
    g(f"v_add_f32 v{t0}, v{t0}, v{t0+1}")
    g(f"v_add_f32 v{t0+1}, v{t0+2}, v{t0+3}")
    g("s_nop 1")
    g(f"v_permlane32_swap_b32 v{t0}, v{t0+1}")
    g("s_nop 1")
    g(f"v_add_f32 v{t0}, v{t0}, v{t0+1}")
    for ror in (8, 4, 2, 1):
        g("s_nop 1")
        g(f"v_max_f32_dpp v{t0}, v{t0}, v{t0} row_ror:{ror} row_mask:0xf bank_mask:0xf")
    g(f"v_mov_b32 v{t0+1}, v{t0}")
    g("s_nop 1")
    g(f"v_permlane16_swap_b32 v{t0}, v{t0+1}")
    g("s_nop 1")
    g(f"v_max_f32 v{t0}, v{t0}, v{t0+1}")
    g(f"""
    s_lshl_b32 s{S_TMP}, s{S_PART}, 8
    s_add_u32 s{S_TMP}, s{S_TMP}, {WS_KN}
    v_lshrrev_b32 v{t0+1}, 5, v0
    v_lshlrev_b32 v{t0+1}, 7, v{t0+1}
    s_mov_b64 s[{S_EXEC}:{S_EXEC+1}], exec
    s_mov_b32 exec_lo, 1
    s_mov_b32 exec_hi, 1
    buffer_atomic_umax v{t0}, v{t0+1}, s[{S_WS}:{S_WS+3}], s{S_TMP} offen sc1
    s_mov_b64 exec, s[{S_EXEC}:{S_EXEC+1}]
    """)
    v = acc + 32
    g("s_waitcnt lgkmcnt(0)")
    for i in range(0, 16, 2):
        g(f"v_pk_mul_f32 v[{V['rowb']+i}:{V['rowb']+i+1}], v[{V['rowb']+i}:{V['rowb']+i+1}], v[{V['csv']&~1}:{(V['csv']&~1)+1}] op_sel:[0,{V['csv']&1}] op_sel_hi:[1,{V['csv']&1}]")
    for i in range(0, 16, 2):
        g(f"v_pk_fma_f32 v[{v+i}:{v+i+1}], v[{v+i}:{v+i+1}], v[{V['rowa']+i}:{V['rowa']+i+1}], v[{V['rowb']+i}:{V['rowb']+i+1}]")
    for i in range(8):
        g(f"v_cvt_pk_bf16_f32 v{pk+i}, v{v+2*i}, v{v+2*i+1}")
    g(f"""
    v_bfe_u32 v{t0}, v0, 4, 1
    v_lshlrev_b32 v{t0}, 16, v{t0}
    v_lshrrev_b32 v{t0+1}, 5, v0
    v_lshl_add_u32 v{t0}, v{t0+1}, 8, v{t0}
    v_and_b32 v{t0+1}, 15, v0
    v_lshl_add_u32 v{t0}, v{t0+1}, 4, v{t0}
    s_add_u32 s{S_TMP+2}, s{S_TMP+2}, 0
    s_lshl_b32 s{S_TMP}, s{S_PART}, 17
    s_lshl_b32 s{S_TMP+1}, s{S_T}, 10
    s_add_u32 s{S_TMP}, s{S_TMP}, s{S_TMP+1}
    s_add_u32 s{S_TMP}, s{S_TMP}, {WS_V}
    v_add_u32 v{t0}, s{S_TMP}, v{t0}
    """)
    g.vmem(f"buffer_store_dwordx4 v[{pk}:{pk+3}], v{t0}, s[{S_WS}:{S_WS+3}], 0 offen", "st")
    g.vmem(f"buffer_store_dwordx4 v[{pk+4}:{pk+7}], v{t0}, s[{S_WS}:{S_WS+3}], 0 offen offset:512", "st")
    return finish(g, name, c, V)
```

```python
from common import *
from gemm import rsq_eps
import chain
from chain import (S_WS, S_TB, S_J, S_WAVE, S_TT, S_NG, S_LW, S_KB, S_DMA, S_T, S_TMP, S_EXEC, S_PART, S_SLAB, SCR)

S_XR, S_WR = 8, 16
ROT = int(os.environ.get('ROT', '5'))
S_ROT = 43
S_IDX = 42
NB, NC, CB = 4, 8, 32768
XST = SCR + 2048
XCS = XST + 512
WROW = 3 * D * 2

def loader(g):
    if ROT == 1: g(f's_mov_b32 s{S_ROT}, s{S_J}')
    if ROT == 2: g(f's_and_b32 s{S_ROT}, s2, 7')
    if ROT == 3:
        g(f's_and_b32 s{S_ROT}, s2, 7'); g(f's_add_u32 s{S_ROT}, s{S_ROT}, s{S_J}')
    if ROT == 4:
        g(f's_lshr_b32 s{S_ROT}, s{S_TB}, 1')
    if ROT == 5:
        g(f's_mov_b32 s{S_ROT}, s{S_TB}')
    if ROT == 6:
        g(f's_and_b32 s{S_ROT}, s2, 7'); g(f's_and_b32 s{S_TMP}, s{S_TB}, 3'); g(f's_lshl_b32 s{S_TMP}, s{S_TMP}, 1'); g(f's_add_u32 s{S_ROT}, s{S_ROT}, s{S_TMP}')
    if ROT == 7:
        g(f's_lshr_b32 s{S_ROT}, s{S_TB}, 1'); g(f's_add_u32 s{S_ROT}, s{S_ROT}, s{S_J}')
    vB, vA, t0 = 2, 4, 8
    vRd, vS, vD, vU = 16, 18, 24, 32
    g(f"""
    v_lshrrev_b32 v{t0}, 3, v0                ; r = lane>>3
    v_and_b32 v{t0+1}, 7, v0                  ; p
    v_lshrrev_b32 v{t0+2}, 1, v{t0}           ; r>>1
    s_lshl_b32 s{S_TMP}, s{S_TB}, 6
    s_lshl_b32 s{S_TMP+1}, s{S_LW}, 4
    s_add_u32 s{S_TMP}, s{S_TMP}, s{S_TMP+1}
    v_add_u32 v{t0+3}, s{S_TMP}, v{t0}
    v_lshlrev_b32 v{t0+3}, 10, v{t0+3}
    v_xor_b32 v{t0+4}, v{t0+1}, v{t0+2}
    v_lshl_add_u32 v{vB}, v{t0+4}, 4, v{t0+3}
    v_xor_b32 v{t0+4}, 4, v{t0+4}
    v_lshl_add_u32 v{vB+1}, v{t0+4}, 4, v{t0+3}
    v_add_u32 v{vB+1}, 8192, v{vB+1}
    s_lshl_b32 s{S_TMP+1}, s{S_LW}, 4
    v_add_u32 v{t0+3}, s{S_TMP+1}, v{t0}
    v_mul_u32_u24 v{t0+3}, {WROW}, v{t0+3}
    v_and_b32 v{t0+2}, 1, v{t0+2}
    v_lshlrev_b32 v{t0+2}, 2, v{t0+2}
    v_xor_b32 v{t0+4}, v{t0+1}, v{t0+2}
    v_lshl_add_u32 v{vA}, v{t0+4}, 4, v{t0+3}
    s_lshl_b32 s{S_TMP}, s{S_J}, 7
    v_add_u32 v{vA}, s{S_TMP}, v{vA}
    v_add_u32 v{vA+1}, {8*WROW}, v{vA}
    s_lshl_b32 s{S_DMA}, s{S_LW}, 11
    """)
    def chunk(ch):
        slot = (ch % NB) * CB
        if ROT:
            g(f"s_add_u32 s{S_TMP}, s{S_ROT}, {ch}")
            g(f"s_and_b32 s{S_TMP}, s{S_TMP}, 7")
        else:
            g(f"s_mov_b32 s{S_TMP}, {ch}")
        g(f"s_lshl_b32 s{S_TMP+1}, s{S_TMP}, 7")
        g(f"s_mul_i32 s{S_TMP+2}, s{S_TMP}, {64*WROW}")
        for e in range(2):
            g(f"s_add_u32 m0, s{S_DMA}, {slot + e*1024}")
            g("s_nop 0")
            g.vmem(f"buffer_load_dwordx4 v{vB+e}, s[{S_XR}:{S_XR+3}], s{S_TMP+1} offen lds", f"c{ch}")
        for P in range(3):
            g(f"s_add_u32 s{S_KB}, s{S_TMP+2}, {P*1024}")
            for e in range(2):
                g(f"s_add_u32 m0, s{S_DMA}, {slot + 8192 + P*8192 + e*1024}")
                g("s_nop 0")
                g.vmem(f"buffer_load_dwordx4 v{vA+e}, s[{S_WR}:{S_WR+3}], s{S_KB} offen lds", f"c{ch}")
    if int(os.environ.get('K0TOUCH', '0')) == 2: g('s_barrier')
    chunk(0); chunk(1); chunk(2)
    g.wait_vm("c0")
    g("s_barrier")
    chunk(3)
    for ch in range(NC - 1):
        g.wait_vm(f"c{ch+1}")
        g("s_barrier")
        if ch >= 1 and ch + NB - 1 < NC: chunk(ch + NB - 1)
    g("s_barrier")
    g("s_barrier")
    g("s_endpgm")

def compute(g, name):
    V = {}
    n = 1
    def al(nm, cnt, align=1):
        nonlocal n
        n = (n + align - 1) // align * align
        V[nm] = n; n += cnt
    al('t0', 6, 2); al('vB', 4); al('vA', 1); al('vBc', 4); al('vAc', 2); al('ad', 1); al('ones', 4, 4); al('ab', 2, 2); al('abq', 2, 2); al('mv', 4, 2)
    al('E', 32, 4); al('F', 16, 4); al('acc', 48, 4); al('frag', 64, 4); al('cs', 32, 4); al('pk', 8, 4); al('csv', 2, 2); al('dmy', 2, 2); al('dmy2', 2, 2)
    V['_n'] = n
    V['rowa'] = V['frag']; V['rowb'] = V['frag'] + 16
    t0, acc, fr, vB, vA, ones = V['t0'], V['acc'], V['frag'], V['vB'], V['vA'], V['ones']
    if int(os.environ.get("K0TOUCH", "0")):
        dm = V['dmy']
        g(f"""
        v_lshlrev_b32 v{dm}, 7, v0
        s_mul_i32 s{S_TMP}, s{S_IDX}, {384*128}
        s_lshl_b32 s{S_TMP+1}, s{S_WAVE}, 14
        s_add_u32 s{S_TMP}, s{S_TMP}, s{S_TMP+1}
        s_cmp_eq_u32 s{S_WAVE}, 3
        s_cbranch_scc1 L_{name}_tx
        buffer_load_dword v{dm+1}, v{dm}, s[{S_WR}:{S_WR+3}], s{S_TMP} offen
        s_add_u32 s{S_TMP}, s{S_TMP}, 8192
        buffer_load_dword v{dm+1}, v{dm}, s[{S_WR}:{S_WR+3}], s{S_TMP} offen
        s_branch L_{name}_td
        L_{name}_tx:
        s_and_b32 s{S_TMP}, s2, 7
        s_lshl_b32 s{S_TMP}, s{S_TMP}, 18
        s_lshl_b32 s{S_TMP+1}, s{S_IDX}, 13
        s_add_u32 s{S_TMP}, s{S_TMP}, s{S_TMP+1}
        buffer_load_dword v{dm+1}, v{dm}, s[{S_XR}:{S_XR+3}], s{S_TMP} offen
        L_{name}_td:
        """)
        if int(os.environ["K0TOUCH"]) == 2:
            g("s_waitcnt vmcnt(0)")
            g.stamp("touch_done")
            g("s_barrier")
    code_prefetch(g, name, V['dmy2'], S_TMP+2, S_IDX)
    g(f"""
    v_and_b32 v{t0}, 31, v0                   ; t
    v_lshrrev_b32 v{t0+1}, 5, v0              ; h
    v_lshrrev_b32 v{t0+2}, 3, v{t0}           ; t>>3
    s_lshl_b32 s{S_TMP}, s{S_TT}, 2
    v_add_u32 v{t0+2}, s{S_TMP}, v{t0+2}
    v_lshlrev_b32 v{t0+2}, 10, v{t0+2}
    v_and_b32 v{t0+3}, 7, v{t0}
    v_lshl_add_u32 v{t0+2}, v{t0+3}, 7, v{t0+2}   ; + (t&7)*128
    v_bfe_u32 v{t0+3}, v{t0}, 1, 3            ; s(t) = (t>>1)&7
    v_xor_b32 v{t0+3}, v{t0+3}, v{t0+1}       ; s ^ h
    """)
    for i in range(4):
        g(f"v_xor_b32 v{t0+4}, {2*i}, v{t0+3}")
        g(f"v_lshl_add_u32 v{vB+i}, v{t0+4}, 4, v{t0+2}")
    g(f"""
    v_and_b32 v{t0+2}, 15, v0                 ; i16
    v_lshrrev_b32 v{t0+3}, 2, v{t0+2}         ; r4
    v_lshlrev_b32 v{t0+4}, 10, v{t0+1}        ; h*1024
    v_lshl_add_u32 v{t0+4}, v{t0+3}, 7, v{t0+4}
    v_lshrrev_b32 v{t0+3}, 1, v{t0+3}         ; (r4>>1)
    v_xor_b32 v{t0+3}, s{S_NG}, v{t0+3}       ; u ^ (r4>>1)   (r4 < 4)
    v_lshl_add_u32 v{t0+4}, v{t0+3}, 6, v{t0+4}
    v_bfe_u32 v{t0+3}, v0, 4, 1
    v_lshl_add_u32 v{t0+4}, v{t0+3}, 5, v{t0+4}
    v_and_b32 v{t0+2}, 3, v{t0+2}
    v_lshl_add_u32 v{t0+4}, v{t0+2}, 3, v{t0+4}
    v_add_u32 v{vA}, 8192, v{t0+4}
    """)
    for i in range(4): g(f"v_mov_b32 v{ones+i}, 0x3f803f80")
    for i in range(32): g(f"v_mov_b32 v{V['E']+i}, 0")
    for i in range(16): g(f"v_mov_b32 v{V['F']+i}, 0")
    g(f"s_lshl_b32 s{S_PART}, s{S_J}, 1")
    g(f"s_add_u32 s{S_PART}, s{S_PART}, s{S_NG}")
    FS = 16
    for i in range(48): g(f"v_mov_b32 v{acc+i}, 0")
    vBc, vAc = V['vBc'], V['vAc']
    S_SL, S_SN, S_IT = S_TMP+6, S_TMP+7, S_TMP+8
    def reads(i, nxt):
        st = fr + i * FS
        g.lds(f"ds_read_b128 v[{st}:{st+3}], v{vBc+i}", f"r{i}")
        for P in range(3):
            for half in range(2):
                d = st + 4 + 4*P + 2*half
                g.lds(f"ds_read_b64_tr_b16 v[{d}:{d+1}], v{vAc+nxt} offset:{P*8192 + i*2048 + half*512}", f"r{i}")
    def work(q, tt, ng):
        st = fr + q * FS
        B = f"v[{st}:{st+3}]"
        def A(P): return f"v[{st+4+4*P}:{st+7+4*P}]"
        def cin(P): return f"v[{acc+16*P}:{acc+16*P+15}]"
        ONE = f"v[{ones}:{ones+3}]"
        E0 = f"v[{V['E']}:{V['E']+15}]"; E1 = f"v[{V['E']+16}:{V['E']+31}]"
        g(f"v_mfma_f32_32x32x16_bf16 v[{acc}:{acc+15}], {A(0)}, {B}, {cin(0)}")
        g(f"v_mfma_f32_32x32x16_bf16 v[{acc+16}:{acc+31}], {A(1)}, {B}, {cin(1)}")
        g(f"v_mfma_f32_32x32x16_bf16 v[{acc+32}:{acc+47}], {B}, {A(2)}, {cin(2)}")
        Fr = f"v[{V['F']}:{V['F']+15}]"
        g(f"v_mfma_f32_32x32x16_bf16 {Fr}, {ONE if ng == 0 else B}, {B}, {Fr}")
        g(f"v_mfma_f32_32x32x16_bf16 {E0}, {A(tt)}, {ONE}, {E0}")
        if q % 2 == tt: g(f"v_mfma_f32_32x32x16_bf16 {E1}, {A(2)}, {ONE}, {E1}")
    g.lg = []
    g(f"v_mov_b32 v{vBc}, v{vB}")
    g(f"v_mov_b32 v{vBc+1}, v{vB+1}")
    g(f"v_mov_b32 v{vAc+1}, v{vA}")
    g(f"s_mov_b32 s{S_SL}, 0")
    g(f"s_mov_b32 s{S_IT}, {NC}")
    g("s_barrier")
    g.stamp("y0")
    reads(0, 1); reads(1, 1)
    for w in range(1, 4):
        g(f"s_cmp_eq_u32 s{S_WAVE}, {w}")
        g(f"s_cbranch_scc1 L_{name}_loop{w}")
    for w in range(4):
        tt, ng = w & 1, w >> 1
        g(f"L_{name}_loop{w}:")
        g("s_barrier")
        g(f"""
        s_add_u32 s{S_SN}, s{S_SL}, {CB}
        s_and_b32 s{S_SN}, s{S_SN}, {NB*CB - 1}
        v_add_u32 v{vBc+2}, s{S_SL}, v{vB+2}
        v_add_u32 v{vBc+3}, s{S_SL}, v{vB+3}
        v_add_u32 v{vAc}, s{S_SL}, v{vA}
        """)
        g.lg = ["r0"]*7 + ["r1"]*7
        for i in range(4):
            g.wait_lg(f"r{i}")
            if i == 2:
                g(f"v_add_u32 v{vBc}, s{S_SN}, v{vB}")
                g(f"v_add_u32 v{vBc+1}, s{S_SN}, v{vB+1}")
                g(f"v_add_u32 v{vAc+1}, s{S_SN}, v{vA}")
            if i < 2: reads(i + 2, 0)
            else:     reads(i - 2, 1)
            work(i, tt, ng)
        g(f"""
        s_mov_b32 s{S_SL}, s{S_SN}
        s_sub_u32 s{S_IT}, s{S_IT}, 1
        s_cmp_lg_u32 s{S_IT}, 0
        s_cbranch_scc1 L_{name}_loop{w}
        """)
        if w < 3: g(f"s_branch L_{name}_loopend")
    g(f"L_{name}_loopend:")
    g("s_waitcnt lgkmcnt(0)")
    g.lg = []
    g.stamp("loop")
    mv, cs, E = V['mv'], V['cs'], V['E']
    g(f"""
    s_lshl_b32 s{S_TMP}, s{S_WAVE}, 8
    s_add_u32 s{S_TMP}, s{S_TMP}, {XCS}
    v_lshrrev_b32 v{t0}, 5, v0
    v_lshlrev_b32 v{t0}, 4, v{t0}             ; 16*h
    v_add_u32 v{t0+1}, s{S_TMP}, v{t0}
    s_nop 15
    s_mov_b64 s[{S_EXEC}:{S_EXEC+1}], exec
    s_mov_b32 exec_lo, 1
    s_mov_b32 exec_hi, 1
    """)
    for k in range(2):
        for gq in range(4):
            g(f"ds_write_b128 v{t0+1}, v[{E+16*k+4*gq}:{E+16*k+4*gq+3}] offset:{128*k + 32*gq}")
    g(f"s_mov_b64 exec, s[{S_EXEC}:{S_EXEC+1}]")
    Fb = V['F']
    g(f"""
    v_and_b32 v{t0+2}, 31, v0                 ; t
    s_lshl_b32 s{S_TMP}, s{S_TT}, 5
    v_add_u32 v{t0+3}, s{S_TMP}, v{t0+2}
    v_lshlrev_b32 v{t0+3}, 3, v{t0+3}
    s_lshl_b32 s{S_TMP}, s{S_NG}, 2
    s_add_u32 s{S_TMP}, s{S_TMP}, {XST}
    v_add_u32 v{t0+3}, s{S_TMP}, v{t0+3}
    s_cmp_eq_u32 s{S_NG}, 0
    s_cbranch_scc1 L_{name}_sw
    v_lshrrev_b32 v{t0+4}, 3, v{t0+2}
    v_lshlrev_b32 v{t0+4}, 2, v{t0+4}
    v_and_b32 v{t0+5}, 3, v{t0+2}
    v_add_u32 v{t0+4}, v{t0+4}, v{t0+5}
    """)
    for r in range(1, 16):
        g(f"v_cmp_eq_u32 vcc, {r}, v{t0+4}")
        g("s_nop 1")
        g(f"v_cndmask_b32 v{Fb}, v{Fb}, v{Fb+r}, vcc")
    g(f"""
    v_bfe_u32 v{t0+4}, v{t0+2}, 2, 1
    v_lshrrev_b32 v{t0+5}, 5, v0
    v_cmp_eq_u32 vcc, v{t0+4}, v{t0+5}
    s_and_saveexec_b64 s[{S_EXEC}:{S_EXEC+1}], vcc
    ds_write_b32 v{t0+3}, v{Fb}
    s_mov_b64 exec, s[{S_EXEC}:{S_EXEC+1}]
    s_branch L_{name}_sd
    L_{name}_sw:
    ds_write_b32 v{t0+3}, v{Fb}
    L_{name}_sd:
    """)
    g(f"""
    s_waitcnt lgkmcnt(0)
    s_barrier
    s_lshl_b32 s{S_TMP}, s{S_NG}, 9
    s_add_u32 s{S_TMP}, s{S_TMP}, {XCS}
    v_add_u32 v{t0+1}, s{S_TMP}, v{t0}
    v_and_b32 v{t0+2}, 31, v0
    v_lshlrev_b32 v{t0+3}, 2, v{t0+2}
    v_add_u32 v{t0+3}, s{S_TMP}, v{t0+3}
    s_lshl_b32 s{S_TMP}, s{S_TT}, 5
    v_add_u32 v{t0+2}, s{S_TMP}, v{t0+2}
    v_lshlrev_b32 v{t0+2}, 3, v{t0+2}
    v_add_u32 v{t0+2}, {XST}, v{t0+2}
    ds_read_b64 v[{mv}:{mv+1}], v{t0+2}
    ds_read_b32 v{V['csv']}, v{t0+3} offset:128
    ds_read_b32 v{V['csv']+1}, v{t0+3} offset:{256+128}
    """)
    for gq in range(4):
        g(f"ds_read_b128 v[{cs+4*gq}:{cs+4*gq+3}], v{t0+1} offset:{32*gq}")
        g(f"ds_read_b128 v[{cs+16+4*gq}:{cs+16+4*gq+3}], v{t0+1} offset:{256+32*gq}")
    g("s_waitcnt lgkmcnt(0)")
    g(f"v_add_f32 v{V['csv']}, v{V['csv']}, v{V['csv']+1}")
    g(f"v_mul_f32 v{mv}, {fl(1.0/D)}, v{mv}")
    g(f"v_mul_f32 v{mv+1}, {fl(1.0/D)}, v{mv+1}")
    g(f"v_fma_f32 v{mv+1}, -v{mv}, v{mv}, v{mv+1}")
    g(f"v_max_f32 v{mv+1}, 0, v{mv+1}")
    chain.qkv_epilogue(g, V, t0, 0)
    g.stamp("done")
    return V

def k0_kernel(name):
    g = Gen()
    g(kernel_header(name))
    g.stamp("start")
    g(f"""
    s_cmp_ge_u32 s2, 256
    s_cbranch_scc1 L_{name}_end
    s_load_dwordx2 s[6:7], s[0:1], {KA_WS}
    s_load_dwordx4 s[32:35], s[0:1], {KA_X}        ; x, wqkv
    v_lshrrev_b32 v1, 6, v0
    v_mov_b32 v2, v0
    v_and_b32 v0, 63, v0
    s_and_b32 s{S_TMP}, s2, 7
    s_lshr_b32 s{S_TMP+1}, s2, 3
    v_readfirstlane_b32 s{S_WAVE}, v1
    s_mov_b32 s{S_IDX}, s{S_TMP+1}
    s_and_b32 s{S_J}, s{S_TMP+1}, 7
    s_lshr_b32 s{S_TMP+1}, s{S_TMP+1}, 3
    s_lshl_b32 s{S_TB}, s{S_TMP}, 2
    s_add_u32 s{S_TB}, s{S_TB}, s{S_TMP+1}
    s_and_b32 s{S_TT}, s{S_WAVE}, 1
    s_bfe_u32 s{S_NG}, s{S_WAVE}, 0x10001
    s_and_b32 s{S_LW}, s{S_WAVE}, 3
    s_lshl_b32 s{S_T}, s{S_TB}, 1
    s_add_u32 s{S_T}, s{S_T}, s{S_TT}
    s_waitcnt lgkmcnt(0)
    """)
    srd(g, S_WS, 6, 7, WS_USED)
    srd(g, S_XR, 32, 33, S * D * 2)
    srd(g, S_WR, 34, 35, D * 3 * D * 2)
    g(f"""
    s_cmp_gt_u32 s2, 1
    s_cbranch_scc1 L_{name}_nz
    v_mov_b32 v4, 0
    v_mov_b32 v5, 0
    v_mov_b32 v6, 0
    v_mov_b32 v7, 0
    s_cmp_eq_u32 s2, 1
    s_cbranch_scc1 L_{name}_z1
    v_lshlrev_b32 v3, 8, v2
    v_add_u32 v3, {WS_CNT}, v3
    buffer_store_dword v4, v3, s[{S_WS}:{S_WS+3}], 0 offen
    s_branch L_{name}_nz
    L_{name}_z1:
    v_lshlrev_b32 v3, 4, v2
    v_add_u32 v3, {WS_CSQ}, v3
    buffer_store_dwordx4 v[4:7], v3, s[{S_WS}:{S_WS+3}], 0 offen
    v_add_u32 v3, 8192, v3
    buffer_store_dwordx4 v[4:7], v3, s[{S_WS}:{S_WS+3}], 0 offen
    v_add_u32 v3, 8192, v3
    buffer_store_dwordx4 v[4:7], v3, s[{S_WS}:{S_WS+3}], 0 offen
    L_{name}_nz:
    s_cmp_ge_u32 s{S_WAVE}, 4
    s_cbranch_scc1 L_{name}_ld
    """)
    gc = Gen(); gc.stamps = g.stamps
    V = compute(gc, name)
    g.l += gc.l
    if STAMPS:
        g("s_waitcnt vmcnt(0)")
        g.stamp("end")
    g.stamp_flush(0, S_WAVE)
    g("s_endpgm")
    g(f"L_{name}_ld:")
    gl = Gen(); loader(gl)
    g.l += gl.l
    g(f"L_{name}_end:")
    g("s_endpgm")
    return g.text() + kernel_desc(name, max(V['_n'], 32), 64), dict(name=name, grid=256, block=512, lds=XCS + 1024)
```

```python
from common import *

UNITS = []
for p in range(24): UNITS.append((KA_WQKV, 3*D*2, D*3*D*2, p, 0, 32, WS_WQ, WS_CSQ))
for p in range(8):  UNITS.append((KA_WO, D*2, D*D*2, p, 0, 32, WS_WO, None))
for p in range(8):  UNITS.append((KA_W1, D*2, D*D*2, p, 0, 32, WS_W1, WS_CS1))
for p in range(8):  UNITS.append((KA_W2, D*2, D*D*2, p, 0, 32, WS_W2, None))
for p in range(28): UNITS.append((KA_W3, F*2, D*F*2, p, 0, 32, WS_W3, WS_CS3))
for p in range(8):
    for kq in range(4): UNITS.append((KA_W4, D*2, F*D*2, p, 28*kq, 112, WS_W4, None))
NUNITS = 64 + len(UNITS)

def prep_kernel(name):
    g = Gen()
    g(kernel_header(name))
    g(f"""
    s_cmp_ge_u32 s2, {NUNITS}
    s_cbranch_scc1 L_{name}_end
    s_load_dwordx2 s[4:5], s[0:1], {KA_X}
    s_load_dwordx2 s[6:7], s[0:1], {KA_WS}
    s_load_dwordx4 s[24:27], s[0:1], {KA_WQKV}
    s_load_dwordx4 s[28:31], s[0:1], {KA_W1}       ; w1, w2
    s_load_dwordx4 s[32:35], s[0:1], {KA_W3}       ; w3, w4
    v_lshrrev_b32 v1, 6, v0
    v_and_b32 v2, 63, v0                 ; lane
    s_nop 0
    v_readfirstlane_b32 s22, v1          ; wave
    s_waitcnt lgkmcnt(0)
    """)
    srd(g, 12, 6, 7, WS_USED)
    g(f"""
    s_cmp_ge_u32 s2, 64
    s_cbranch_scc1 L_{name}_w
    """)
    g(f"""
    s_cmp_lg_u32 s2, 0
    s_cbranch_scc1 L_{name}_nz
    v_lshlrev_b32 v3, 8, v0
    v_add_u32 v3, {WS_CNT}, v3
    v_mov_b32 v4, 0
    buffer_store_dword v4, v3, s[12:15], 0 offen
    v_lshlrev_b32 v3, 7, v0
    v_add_u32 v3, {WS_KN}, v3
    v_cmp_gt_u32 vcc, 64, v0
    s_and_saveexec_b64 s[30:31], vcc
    s_cbranch_execz L_{name}_nz2
    buffer_store_dword v4, v3, s[12:15], 0 offen
    L_{name}_nz2:
    s_mov_b64 exec, s[30:31]
    L_{name}_nz:
    """)
    srd(g, 8, 4, 5, S * D * 2)
    g(f"""
    v_and_b32 v3, 31, v2                 ; t
    v_lshrrev_b32 v4, 5, v2              ; h
    s_lshl_b32 s16, s2, 5                ; 32*T
    v_add_u32 v5, s16, v3                ; row
    v_lshlrev_b32 v5, 10, v5             ; row*1024
    v_lshl_add_u32 v5, v4, 4, v5         ; + 16h
    s_lshl_b32 s17, s22, 7               ; 128*w
    v_add_u32 v5, s17, v5
    """)
    for i in range(4):
        g.vmem(f"buffer_load_dwordx4 v[{16+4*i}:{19+4*i}], v5, s[8:11], 0 offen offset:{32*i}", f"x{i}")
    g(f"""
    s_lshl_b32 s16, s2, 15
    s_lshl_b32 s17, s22, 12
    s_add_u32 s16, s16, s17
    s_add_u32 s16, s16, {WS_X}
    v_lshlrev_b32 v6, 4, v2
    v_add_u32 v6, s16, v6
    s_lshl_b32 s16, s2, 12               ; T*4096
    s_lshl_b32 s17, s22, 9               ; (2w)*256
    s_add_u32 s16, s16, s17
    s_add_u32 s16, s16, {WS_SX}
    v_lshlrev_b32 v7, 2, v2
    v_add_u32 v7, s16, v7
    """)
    for pair in range(2):
        g.wait_vm([f"x{2*pair}", f"x{2*pair+1}"])
        first = True
        for i in (2*pair, 2*pair+1):
            b = 16 + 4*i
            for r in range(4):
                g(f"v_lshlrev_b32 v8, 16, v{b+r}")
                g(f"v_and_b32 v9, 0xffff0000, v{b+r}")
                if first:
                    g("v_add_f32 v10, v8, v9")
                    g("v_mul_f32 v11, v8, v8")
                    g("v_fmac_f32 v11, v9, v9")
                    first = False
                else:
                    g("v_add_f32 v10, v10, v8")
                    g("v_fmac_f32 v11, v8, v8")
                    g("v_add_f32 v10, v10, v9")
                    g("v_fmac_f32 v11, v9, v9")
        g("s_nop 1")
        g("v_permlane32_swap_b32 v10, v11")
        g("s_nop 1")
        g("v_add_f32 v10, v10, v11")
        g.vmem(f"buffer_store_dword v10, v7, s[12:15], 0 offen offset:{256*pair}", "st")
        for i in (2*pair, 2*pair+1):
            b = 16 + 4*i
            g(f"v_permlane32_swap_b32 v{b}, v{b+2}")
            g(f"v_permlane32_swap_b32 v{b+1}, v{b+3}")
        for i in (2*pair, 2*pair+1):
            b = 16 + 4*i
            g.vmem(f"buffer_store_dwordx4 v[{b}:{b+3}], v6, s[12:15], 0 offen offset:{1024*i}", "st")
    g("s_endpgm")
    g(f"L_{name}_w:")
    g(f"s_sub_u32 s16, s2, 64")
    ranges = [(0, 24, 24, 3*D*2, D*3*D*2, WS_WQ, WS_CSQ, 32),
              (24, 32, 26, D*2, D*D*2, WS_WO, 0, 32),
              (32, 40, 28, D*2, D*D*2, WS_W1, WS_CS1, 32),
              (40, 48, 30, D*2, D*D*2, WS_W2, 0, 32),
              (48, 76, 32, F*2, D*F*2, WS_W3, WS_CS3, 32),
              (76, 108, 34, D*2, F*D*2, WS_W4, 0, 112)]
    for i, (lo, hi, sp, rowb, matb, dst, cs, ns) in enumerate(ranges):
        if i < len(ranges) - 1:
            g(f"s_cmp_ge_u32 s16, {hi}")
            g(f"s_cbranch_scc1 L_{name}_r{i+1}")
        srd(g, 8, sp, sp+1, matb)
        g(f"s_mov_b32 s17, {rowb}")
        g(f"s_sub_u32 s18, s16, {lo}")
        if ns == 112:
            g("s_and_b32 s19, s18, 3")
            g("s_mul_i32 s19, s19, 28")
            g("s_lshr_b32 s18, s18, 2")
        else:
            g("s_mov_b32 s19, 0")
        g(f"s_mov_b32 s20, {ns}")
        g(f"s_mov_b32 s21, {dst}")
        g(f"s_mov_b32 s23, {cs}")
        if i < len(ranges) - 1:
            g(f"s_branch L_{name}_go")
            g(f"L_{name}_r{i+1}:")
    g(f"L_{name}_go:")
    g(f"""
    s_cmp_eq_u32 s20, 112
    s_cselect_b32 s36, 7, 8
    s_cmp_ge_u32 s22, s36
    s_cbranch_scc1 L_{name}_end
    s_lshl_b32 s36, s22, 2
    s_add_u32 s36, s36, s19
    v_lshrrev_b32 v3, 3, v2
    s_lshl_b32 s37, s36, 4
    v_add_u32 v3, s37, v3
    v_mul_lo_u32 v3, v3, s17
    v_and_b32 v4, 7, v2
    v_lshl_add_u32 v3, v4, 4, v3
    s_lshl_b32 s37, s18, 7
    v_add_u32 v3, s37, v3
    s_lshl_b32 s38, s17, 3                  ; 8 rows
    s_lshl_b32 s39, s22, 13
    s_mov_b32 s40, 0
    """)
    for i in range(8):
        g(f"s_add_u32 m0, s39, {1024*i}")
        g("s_nop 0")
        g.vmem(f"buffer_load_dwordx4 v3, s[8:11], s40 offen lds", f"w{i//2}")
        if i < 7: g("s_add_u32 s40, s40, s38")
    g(f"""
    v_lshrrev_b32 v5, 5, v2
    v_lshlrev_b32 v5, 9, v5                 ; h*4*128
    v_and_b32 v6, 15, v2
    v_lshrrev_b32 v7, 2, v6
    v_lshl_add_u32 v5, v7, 7, v5
    v_and_b32 v6, 3, v6
    v_lshl_add_u32 v5, v6, 3, v5
    v_bfe_u32 v6, v2, 4, 1
    v_lshl_add_u32 v5, v6, 5, v5
    v_add_u32 v5, s39, v5
    s_lshl_b32 s37, s18, 1
    s_mul_i32 s37, s37, s20
    s_add_u32 s37, s37, s36
    s_lshl_b32 s37, s37, 10
    s_add_u32 s37, s37, s21
    v_lshlrev_b32 v6, 4, v2
    v_add_u32 v6, s37, v6
    s_lshl_b32 s38, s20, 10
    v_add_u32 v7, s38, v6
    v_mov_b32 v12, 0
    v_mov_b32 v13, 0
    """)
    for sl in range(4):
        g.wait_vm(f"w{sl}")
        for u in range(2):
            b = 16 + 8*sl + 4*u
            g(f"ds_read_b64_tr_b16 v[{b}:{b+1}], v5 offset:{2048*sl + 64*u}")
            g(f"ds_read_b64_tr_b16 v[{b+2}:{b+3}], v5 offset:{2048*sl + 64*u + 1024}")
    for sl in range(4):
        g(f"s_waitcnt lgkmcnt({4*(3-sl)})")
        for u in range(2):
            b = 16 + 8*sl + 4*u
            g(f"buffer_store_dwordx4 v[{b}:{b+3}], v{6+u}, s[12:15], 0 offen offset:{1024*sl}")
    g(f"""
    s_cmp_eq_u32 s23, 0
    s_cbranch_scc1 L_{name}_end
    """)
    for sl in range(4):
        for u in range(2):
            b = 16 + 8*sl + 4*u
            for r in range(4):
                g(f"v_lshlrev_b32 v8, 16, v{b+r}")
                g(f"v_and_b32 v9, 0xffff0000, v{b+r}")
                g(f"v_add_f32 v{12+u}, v{12+u}, v8")
                g(f"v_add_f32 v{12+u}, v{12+u}, v9")
    g(f"""
    s_nop 1
    v_permlane32_swap_b32 v12, v13
    s_nop 1
    v_add_f32 v12, v12, v13
    s_barrier
    v_lshlrev_b32 v8, 2, v2
    s_lshl_b32 s37, s22, 8
    v_add_u32 v8, s37, v8
    ds_write_b32 v8, v12
    s_waitcnt lgkmcnt(0)
    s_barrier
    s_cmp_lg_u32 s22, 0
    s_cbranch_scc1 L_{name}_end
    v_lshlrev_b32 v8, 2, v2
    """)
    for k in range(8):
        g(f"ds_read_b32 v{16+k}, v8 offset:{256*k}")
    g("s_waitcnt lgkmcnt(0)")
    for k in range(1, 8):
        g(f"v_add_f32 v16, v16, v{16+k}")
    g(f"""
    s_lshl_b32 s37, s18, 8
    s_add_u32 s37, s37, s23
    v_add_u32 v8, s37, v8
    buffer_store_dword v16, v8, s[12:15], 0 offen
    L_{name}_end:
    s_endpgm
    """)
    return g.text() + kernel_desc(name, 64, 64), dict(name=name, grid=NUNITS, block=512, lds=65536)
```

```python
import sys, os
sys.path.insert(0, os.path.dirname(os.path.abspath(__file__)))
from common import *
import prep, gemm, attn, chain, k0

NAME = "interleave_layers__softmax_full_mha__mixer_s_mlp__prompt"
HEADER = open("cdna_kernels/" + NAME + ".s.ref").read().split("; Override launch geometry")[0]

def build(extra_empty=0, mode="chain"):
    ks = {}
    def add(t):
        ks[t[1]['name']] = t
        return t[1]['name']
    kz = add(k0.k0_kernel("k0_kernel"))
    a0, a1 = attn.attn_kernels("attn0_kernel", "attn1_kernel")
    at0 = add(a0); at1 = add(a1)
    if mode == "chain":
        c0 = add(chain.chain_kernel("chain0_kernel", 0))
        c1 = add(chain.chain_kernel("chain1_kernel", 1))
        seq = [kz, at0, c0, at1, c1]
        if os.environ.get("TOUCH"):
            stride = int(os.environ["TOUCH"])
            n = (45 << 20) // stride // 64 // 32
            body = ""
            for i in range(max(n, 1)):
                body += f"    buffer_load_dword v4, v1, s[8:11], s12 offen\n    s_add_u32 s12, s12, {64*stride}\n"
            tk = f""".text
.globl touch_kernel
.p2align 8
.type touch_kernel,@function
touch_kernel:
    s_load_dwordx2 s[4:5], s[0:1], 80
    s_lshr_b32 s6, s2, 3
    s_mul_i32 s12, s6, {max(n,1)*64*stride}
    s_mov_b32 s7, {stride}
    v_mul_lo_u32 v1, v0, s7
    s_waitcnt lgkmcnt(0)
    s_mov_b32 s8, s4
    s_mov_b32 s9, s5
    s_mov_b32 s10, {45 << 20}
    s_mov_b32 s11, 0x00020000
{body}
    s_waitcnt vmcnt(0)
    s_endpgm
""" + kernel_desc("touch_kernel", 16, 16)
            ks["touch_kernel"] = (tk, dict(name="touch_kernel", grid=256, block=64, lds=0))
            seq = ["touch_kernel"] + seq
        if os.environ.get("CODEWARM"):
            cw = f""".text
.globl codewarm_kernel
.p2align 8
.type codewarm_kernel,@function
codewarm_kernel:
    s_getpc_b64 s[4:5]
L_cw_pc:
    s_add_u32 s4, s4, (prep_kernel - L_cw_pc)
    s_addc_u32 s5, s5, -1
    s_lshr_b32 s6, s2, 3
    s_cmp_ge_u32 s6, 15
    s_cbranch_scc1 L_cw_end
    s_lshl_b32 s6, s6, 12
    v_lshlrev_b32 v1, 4, v0
    v_add_u32 v1, s6, v1
    global_load_dwordx4 v[4:7], v1, s[4:5]
    s_waitcnt vmcnt(0)
L_cw_end:
    s_endpgm
""" + kernel_desc("codewarm_kernel", 16, 16)
            ks["codewarm_kernel"] = (cw, dict(name="codewarm_kernel", grid=256, block=256, lds=0))
            seq = ["codewarm_kernel"] + seq
        return finish(ks, seq, extra_empty)
    wo = add(gemm.wo_kernel("wo_kernel"))
    w1 = add(gemm.w1_kernel("w1_kernel"))
    w2 = add(gemm.w2_kernel("w2_kernel"))
    w3 = add(gemm.w3_kernel("w3_kernel"))
    w4a = add(gemm.w4_kernel("w4a_kernel", False))
    w4b = add(gemm.w4_kernel("w4b_kernel", True))
    seq = [p, qkv, at, wo, w1, w2, w3, w4a, qkv, at, wo, w1, w2, w3, w4b]
    return finish(ks, seq, extra_empty)

def finish(ks, seq, extra_empty):
    if extra_empty:
        em = f""".text
.globl empty_kernel
.p2align 8
.type empty_kernel,@function
empty_kernel:
    s_endpgm
""" + kernel_desc("empty_kernel", 8, 16)
        ks["empty_kernel"] = (em, dict(name="empty_kernel", grid=256, block=256, lds=0))
        seq = seq + ["empty_kernel"] * extra_empty
    out = HEADER
    for n in seq:
        m = ks[n][1]
        out += f"; @launch kernel={n} grid=({m['grid']},1,1) block=({m['block']},1,1) lds={m['lds']}\n"
    out += '.amdgcn_target "amdgcn-amd-amdhsa--gfx950"\n'
    out += ".text\nL_code_start:\n"
    for n, (txt, m) in ks.items():
        out += txt
    out += ".text\n.p2align 2\nL_code_end:\n    s_endpgm\n"
    return out, seq, ks

if __name__ == "__main__":
    extra = int(sys.argv[2]) if len(sys.argv) > 2 else 0
    out, seq, ks = build(extra)
    path = sys.argv[1] if len(sys.argv) > 1 else "cdna_kernels/" + NAME + ".s"
    open(path, "w").write(out)
    print("wrote", path, len(out), "bytes")
    import common, json
    if common.STAMPS:
        json.dump(common.STAMP_LABELS, open(path + ".stamps.json", "w"))
```
